```python
import torch

def _softmax(x, axis=-1):
    return torch.softmax(x, dim=axis)
def _gelu(x):
    return torch.nn.functional.gelu(x, approximate="tanh")
def _silu(x):
    return torch.nn.functional.silu(x)
def _sigmoid(x):
    return torch.sigmoid(x)
def _layernorm(x, axis=-1, eps=1e-5):
    m = x.mean(dim=axis, keepdim=True)
    v = x.var(dim=axis, keepdim=True, unbiased=False)
    return (x - m) / torch.sqrt(v + eps)
def _scatter_add(tgt, idx, src, axis=0):
    return tgt.clone().index_add_(axis, idx, src)
def _segment_sum(src, seg, n):
    out = torch.zeros((n,) + src.shape[1:], dtype=src.dtype)
    return out.index_add_(0, seg, src)
def _pad(x, pw):
    flat = tuple(v for pair in reversed(pw) for v in pair)
    return torch.nn.functional.pad(x, flat)

kernel_name = 'concat_heads__gqa_block_cached__gqa_block_cached__near_ridge'

def setup_inputs():

    _w = (lambda a: (lambda t: t.to(torch.bfloat16) if t.is_floating_point() else t)(torch.as_tensor(a)))
    def _A_setup():
        B, Sq, D = 16, 80, 640
        Hq, Hkv, Sk, Dh = 32, 32, 80, 128
        assert Hq % Hkv == 0, (Hq, Hkv)
        return {
            "x": _w((lambda *s: torch.randn(*s, dtype=torch.bfloat16) * 0.8)(B, Sq, D)),
            "k_cache": _w((lambda *s: torch.randn(*s, dtype=torch.bfloat16) * 0.8)(B, Hkv, Sk, Dh)),
            "v_cache": _w((lambda *s: torch.randn(*s, dtype=torch.bfloat16) * 0.05)(B, Hkv, Sk, Dh)),
            "wq": _w((lambda *s: torch.randn(*s, dtype=torch.bfloat16) * 0.8)(D, Hq * Dh) * (D ** -0.5)),
            "wo": _w((lambda *s: torch.randn(*s, dtype=torch.bfloat16) * 0.05)(Hq * Dh, D) * ((Hq * Dh) ** -0.5)),
        }
    _A_in = _A_setup()

    def _B_setup():
        B, Sq, D = 16, 80, 640
        Hq, Hkv, Sk, Dh = 32, 32, 80, 128
        assert Hq % Hkv == 0, (Hq, Hkv)
        return {
            "x": _w((lambda *s: torch.randn(*s, dtype=torch.bfloat16) * 0.8)(B, Sq, D)),
            "k_cache": _w((lambda *s: torch.randn(*s, dtype=torch.bfloat16) * 0.8)(B, Hkv, Sk, Dh)),
            "v_cache": _w((lambda *s: torch.randn(*s, dtype=torch.bfloat16) * 0.05)(B, Hkv, Sk, Dh)),
            "wq": _w((lambda *s: torch.randn(*s, dtype=torch.bfloat16) * 0.8)(D, Hq * Dh) * (D ** -0.5)),
            "wo": _w((lambda *s: torch.randn(*s, dtype=torch.bfloat16) * 0.05)(Hq * Dh, D) * ((Hq * Dh) ** -0.5)),
        }
    _B_in = _B_setup()

    return {
        "A_x": _A_in["x"],
        "A_k_cache": _A_in["k_cache"],
        "A_v_cache": _A_in["v_cache"],
        "A_wq": _A_in["wq"],
        "A_wo": _A_in["wo"],
        "B_x": _B_in["x"],
        "B_k_cache": _B_in["k_cache"],
        "B_v_cache": _B_in["v_cache"],
        "B_wq": _B_in["wq"],
        "B_wo": _B_in["wo"],
    }

def reference(A_x, A_k_cache, A_v_cache, A_wq, A_wo, B_x, B_k_cache, B_v_cache, B_wq, B_wo):
    def _A_ref(x, k_cache, v_cache, wq, wo):
        B, Sq, D = x.shape
        Hq, Dh = 32, 128
        Hkv = k_cache.shape[1]
        rep = Hq // Hkv
        q = (lambda x, *d: x.permute(*d))((x @ wq).reshape(B, Sq, Hq, Dh), 0, 2, 1, 3)
        k = (lambda x, n, axis: torch.repeat_interleave(x, n, dim=axis))(k_cache, rep, axis=1)
        v = (lambda x, n, axis: torch.repeat_interleave(x, n, dim=axis))(v_cache, rep, axis=1)
        scores = torch.einsum("bhqd,bhkd->bhqk", q, k) * (Dh ** -0.5)
        p = _softmax(scores, axis=-1)
        o = torch.einsum("bhqk,bhkd->bhqd", p, v)
        return (lambda x, *d: x.permute(*d))(o, 0, 2, 1, 3).reshape(B, Sq, Hq * Dh) @ wo

    def _B_ref(x, k_cache, v_cache, wq, wo):
        B, Sq, D = x.shape
        Hq, Dh = 32, 128
        Hkv = k_cache.shape[1]
        rep = Hq // Hkv
        q = (lambda x, *d: x.permute(*d))((x @ wq).reshape(B, Sq, Hq, Dh), 0, 2, 1, 3)
        k = (lambda x, n, axis: torch.repeat_interleave(x, n, dim=axis))(k_cache, rep, axis=1)
        v = (lambda x, n, axis: torch.repeat_interleave(x, n, dim=axis))(v_cache, rep, axis=1)
        scores = torch.einsum("bhqd,bhkd->bhqk", q, k) * (Dh ** -0.5)
        p = _softmax(scores, axis=-1)
        o = torch.einsum("bhqk,bhkd->bhqd", p, v)
        return (lambda x, *d: x.permute(*d))(o, 0, 2, 1, 3).reshape(B, Sq, Hq * Dh) @ wo

    a = _A_ref(A_x, A_k_cache, A_v_cache, A_wq, A_wo)
    b = _B_ref(B_x, B_k_cache, B_v_cache, B_wq, B_wo)
    return torch.concatenate([a, b], axis=-1)
```

```python
import re

REG_RE = re.compile(r'(?<![\w.])([vas])(?:\[(\d+):(\d+)\]|(\d+))(?![\w])')

def regs_of(tok):
    out = []
    for m in REG_RE.finditer(tok):
        k = m.group(1)
        if m.group(2) is not None:
            out += [(k, i) for i in range(int(m.group(2)), int(m.group(3)) + 1)]
        else:
            out.append((k, int(m.group(4))))
    for sp in ("vcc", "exec", "m0"):
        if re.search(r'(?<![\w])' + sp + r'(?![\w])', tok):
            out.append(('x', sp))
    return out

TRANS = ("v_exp_f32", "v_rcp_f32", "v_log_f32", "v_rsq_f32", "v_sqrt_f32")
SCC_W = ("s_add_", "s_addc_", "s_sub_", "s_subb_", "s_and_", "s_or_", "s_xor_", "s_lshl_", "s_lshr_", "s_cmp", "s_bitcmp",
         "s_min_", "s_max_", "s_andn2_", "s_ashr_", "s_addk_", "s_bfe_", "s_not_", "s_lshl1_", "s_lshl2_", "s_lshl3_", "s_lshl4_", "s_bcnt")
SCC_R = ("s_addc_", "s_subb_", "s_cselect_", "s_cbranch_scc", "s_cmov")

class I:
    __slots__ = ("text", "op", "kind", "defs", "uses", "tag", "mem_r", "mem_w", "srcC", "prio", "cost", "note", "idx")
    def __init__(self, text, tag=None, mem_r=(), mem_w=(), note=None):
        self.text = text.strip(); self.tag = tag; self.note = note
        self.mem_r = set(mem_r); self.mem_w = set(mem_w); self.srcC = set(); self.prio = 0
        t = self.text
        if t.endswith(":") or t.startswith(".") or t.startswith(";"):
            self.op = t; self.kind = "label" if t.endswith(":") else "dir"; self.defs = set(); self.uses = set(); self.cost = 0; return
        sp = t.split(None, 1); op = sp[0]; self.op = op
        ops = [x.strip() for x in sp[1].split(",")] if len(sp) > 1 else []
        R = [regs_of(x) for x in ops]
        flat = lambda L: set(r for x in L for r in x)
        defs, uses = set(), set(); cost = 1
        if op.startswith("v_mfma"):
            kind = "mfma"; defs = set(R[0]); uses = flat(R[1:]); self.srcC = set(R[3]); cost = 2
        elif op.startswith("v_permlane") and "swap" in op:
            kind = "permlane"; defs = flat(R[:2]); uses = flat(R[:2])
        elif op.startswith("v_cmp"):
            kind = "valu"; defs = set(R[0]); uses = flat(R[1:])
        elif op.startswith("v_readfirstlane") or op.startswith("v_readlane"):
            kind = "readlane"; defs = set(R[0]); uses = flat(R[1:])
        elif op.startswith("v_"):
            kind = "trans" if op.startswith(TRANS) else "valu"
            if kind == "trans": cost = 2
            defs = set(R[0]); uses = flat(R[1:])
            if op.startswith(("v_fmac", "v_dot2c", "v_writelane")): uses |= defs
            if "_co_" in op: defs |= set(R[1]); uses = flat(R[2:])
        elif op.startswith("buffer_load") or op.startswith("global_load"):
            cost = 2
            if re.search(r'\blds\b', t):
                kind = "dma"; uses = flat(R) | {('x', 'm0')}
            else:
                kind = "vload"; defs = set(R[0]); uses = flat(R[1:])
        elif op.startswith("buffer_store") or op.startswith("global_store"):
            kind = "vstore"; uses = flat(R); cost = 2
        elif op.startswith("buffer_atomic") or op.startswith("global_atomic"):
            kind = "vstore"; uses = flat(R); cost = 2
            if re.search(r'\bsc0\b', t): kind = "vload"; defs = set(R[0])
        elif op.startswith("ds_read"):
            kind = "dsread"; defs = set(R[0]); uses = flat(R[1:])
        elif op.startswith("ds_write"):
            kind = "dswrite"; uses = flat(R)
        elif op.startswith("s_load") or op.startswith("s_memtime") or op.startswith("s_memrealtime"):
            kind = "smem"; defs = set(R[0]); uses = flat(R[1:])
        elif op == "s_waitcnt": kind = "wait"
        elif op == "s_nop": kind = "nop"
        elif op == "s_barrier": kind = "barrier"
        elif op.startswith("s_cbranch") or op in ("s_branch", "s_endpgm", "s_setpc_b64", "s_swappc_b64"):
            kind = "branch"; uses = flat(R)
            if "vcc" in op: uses.add(('x', 'vcc'))
            if "exec" in op: uses.add(('x', 'exec'))
        elif op.startswith("WAIT"):
            kind = "pwait"
        elif op.startswith("s_"):
            kind = "salu"
            if op.startswith(("s_cmp", "s_bitcmp", "s_setprio", "s_sleep")): uses = flat(R)
            else:
                defs = set(R[0]); uses = flat(R[1:])
                if op.startswith(("s_addk", "s_mulk", "s_cmov")): uses |= defs
                if "saveexec" in op: defs.add(('x', 'exec')); uses.add(('x', 'exec'))
        else:
            raise ValueError("unknown instr: " + t)
        if op.startswith(SCC_W) or "saveexec" in op: defs.add(('x', 'scc'))
        if op.startswith(SCC_R): uses.add(('x', 'scc'))
        self.kind = kind; self.defs = defs; self.uses = uses; self.cost = cost
    def __repr__(self): return self.text

VM = ("vload", "vstore", "dma")
LG = ("dsread", "dswrite", "smem")
VALU = ("valu", "trans", "permlane", "readlane")

def parse_wait(t):
    vm = re.search(r'vmcnt\((\d+)\)', t); lg = re.search(r'lgkmcnt\((\d+)\)', t)
    return (int(vm.group(1)) if vm else None, int(lg.group(1)) if lg else None)

def insert_waits(code, vmq=None, lgq=None, log=None):
    vmq = list(vmq or []); lgq = list(lgq or []); out = []
    total = {}; seen = {}
    for ins in code:
        if ins.tag: total[ins.tag] = total.get(ins.tag, 0) + 1
    def do_wait(vm, lg, auto, ins=None):
        nonlocal vmq, lgq
        parts = []
        if vm is not None:
            vm = min(vm, 63); parts.append(f"vmcnt({vm})"); vmq = vmq[len(vmq) - vm:] if vm < len(vmq) else vmq
            if vm == 0: vmq = []
        if lg is not None:
            if any(q.kind == "smem" for q in lgq): lg = 0
            lg = min(lg, 15); parts.append(f"lgkmcnt({lg})"); lgq = lgq[len(lgq) - lg:] if lg < len(lgq) else lgq
            if lg == 0: lgq = []
        w = I("s_waitcnt " + " ".join(parts)); out.append(w)
        if auto and log is not None: log.append((w.text, ins.text if ins else ""))
    for ins in code:
        if ins.kind == "pwait":
            sp = ins.text.split(); tags = set(sp[1:])
            for tg in tags: assert total.get(tg, 0) > 0 and seen.get(tg, 0) == total[tg], f"wait on tag {tg} before all its ops were issued"
            q = vmq if sp[0] == "WAITVM" else lgq
            pos = [i for i, o in enumerate(q) if o.tag in tags]
            if pos:
                n = len(q) - 1 - max(pos)
                do_wait(n if sp[0] == "WAITVM" else None, n if sp[0] == "WAITLG" else None, False)
            continue
        if ins.kind == "wait":
            vm, lg = parse_wait(ins.text)
            if vm is not None: vmq = vmq[len(vmq) - vm:] if 0 < vm < len(vmq) else ([] if vm == 0 else vmq)
            if lg is not None:
                if lg == 0: lgq = []
                elif not any(q.kind == "smem" for q in lgq) and lg < len(lgq): lgq = lgq[len(lgq) - lg:]
            out.append(ins); continue
        touch = ins.uses | ins.defs
        nv = nl = None
        for i, o in enumerate(vmq):
            if o.defs & touch and not (ins.kind == "vload" and not (o.defs & ins.uses)):
                nv = len(vmq) - 1 - i
        for i, o in enumerate(lgq):
            if o.defs & touch and not (ins.kind == "dsread" and o.kind == "dsread" and not (o.defs & ins.uses)):
                nl = len(lgq) - 1 - i
        if nv is not None or nl is not None: do_wait(nv, nl, True, ins)
        out.append(ins)
        if ins.tag: seen[ins.tag] = seen.get(ins.tag, 0) + 1
        if ins.kind in VM:
            vmq.append(ins)
            assert len(vmq) <= 63, "vmcnt overflow at " + ins.text
        if ins.kind in LG: lgq.append(ins)
    return out, vmq, lgq

def need_states(p, c):
    n = 0
    vdefs = {r for r in p.defs if r[0] in "va"}
    sdefs = {r for r in p.defs if r[0] == "s" or r == ('x', 'vcc')}
    if p.kind in VALU:
        if c.kind == "mfma" and vdefs & c.uses: n = max(n, 2)
        if c.kind == "permlane" and vdefs & c.uses: n = max(n, 2)
        if c.kind == "readlane" and vdefs & c.uses: n = max(n, 1)
        if "dpp" in c.text and vdefs & c.uses: n = max(n, 2)
        if p.kind == "trans" and c.kind in VALU + ("vstore", "dswrite") and vdefs & c.uses: n = max(n, 1)
        if sdefs:
            if c.kind in VM and sdefs & c.uses: n = max(n, 5)
            if c.kind in VALU and sdefs & c.uses: n = max(n, 4 if c.kind == "readlane" else 2)
            if c.kind in ("salu", "branch", "smem") and sdefs & c.uses: n = max(n, 1)
            if c.kind == "branch" and ('x', 'vcc') in (p.defs & c.uses): n = max(n, 5)
    if p.kind == "mfma":
        if c.kind == "mfma":
            ab = c.uses - c.srcC
            if p.defs & ab: n = max(n, 8)
            if p.defs & c.srcC and p.defs != c.srcC: n = max(n, 6)
            if p.defs & c.defs and not (p.defs & c.srcC): n = max(n, 0)
        elif c.kind in VALU + VM + ("dsread", "dswrite"):
            if p.defs & (c.uses | c.defs): n = max(n, 8)
            if c.kind in VALU and p.srcC & c.defs: n = max(n, 3)
    if p.kind == "salu" and ('x', 'm0') in p.defs and c.kind == "dma": n = max(n, 1)
    if p.kind == "salu" and ('x', 'exec') in p.defs and c.kind in ("permlane",): n = max(n, 1)
    if p.kind == "vstore" and ("x4" in p.op or "x3" in p.op):
        data = {r for r in p.uses if r[0] in "va"}
        if data & c.defs: n = max(n, 2)
    return n

def states_of(ins):
    if ins.kind in ("label", "dir"): return 0
    if ins.kind == "nop": return int(ins.text.split()[1]) + 1
    return 1

def insert_nops(code, log=None, history=None):
    out = list(history or []); base = len(out)
    for ins in code:
        if ins.kind not in ("label", "dir", "nop", "wait"):
            dist = 0; need = 0
            for p in reversed(out):
                k = need_states(p, ins)
                if k - dist > need: need = k - dist
                dist += states_of(p)
                if dist >= 8: break
            if need > 0:
                out.append(I(f"s_nop {need-1}"))
                if log is not None: log.append((need, ins.text))
        out.append(ins)
    return out[base:]

class Prog:
    def __init__(self): self.code = []
    def __call__(self, text, **kw):
        for line in text.split("\n"):
            line = line.split(";")[0].strip() if not line.strip().startswith(";") else line.strip()
            if line: self.code.append(I(line, **kw))
    def add(self, L): self.code += L
    def text(self): return "\n".join(("" if i.kind in ("label", "dir") else "    ") + i.text for i in self.code) + "\n"

def vr(k, a, n=1): return f"{k}{a}" if n == 1 else f"{k}[{a}:{a+n-1}]"

class Slots:
    def __init__(self, mfmas, cap=2):
        self.m = mfmas; self.n = len(mfmas); self.cap = [cap] * self.n; self.ds = [0] * self.n
        self.g = [[] for _ in mfmas]; self.over = 0
    def put(self, pos, ins, hi=None):
        if isinstance(ins, str): ins = I(ins)
        hi = self.n - 1 if hi is None else min(hi, self.n - 1)
        pos = max(0, min(pos, hi)); isds = ins.kind in ("dsread", "dswrite")
        p = pos
        while p <= hi and (self.cap[p] < ins.cost or (isds and self.ds[p])): p += 1
        if p > hi:
            p = max(range(pos, hi + 1), key=lambda q: (self.cap[q] - (2 if isds and self.ds[q] else 0), q)); self.over += 1
        self.cap[p] -= ins.cost; self.ds[p] += isds; self.g[p].append(ins); return p
    def emit(self):
        out = []
        for m, g in zip(self.m, self.g):
            out.append(m); out += g
        return out

def dep_latency(p, c, raw):
    base = 4 * p.cost
    if not raw: return base
    if p.kind == "mfma":
        if c.kind == "mfma" and p.defs == c.srcC and not (p.defs & (c.uses - c.srcC)): return 16
        return 32
    if p.kind == "dsread": return 110
    if p.kind == "vload": return 600
    if p.kind == "trans": return 12
    return base

def list_schedule(code, history=(), verbose=False, keep_order=("vm",)):
    n = len(code)
    preds = [dict() for _ in range(n)]; succs = [dict() for _ in range(n)]
    last_w = {}; readers = {}
    def edge(a, b, lat):
        if a == b: return
        if preds[b].get(a, -1) < lat: preds[b][a] = lat; succs[a][b] = lat
    last_vm = last_ds = last_sync = None
    for i, ins in enumerate(code):
        uses = set(ins.uses) | {('m', t) for t in ins.mem_r}
        defs = set(ins.defs) | {('m', t) for t in ins.mem_w}
        for r in uses:
            if r in last_w: edge(last_w[r], i, dep_latency(code[last_w[r]], ins, r[0] != 'm'))
        for r in defs:
            if r in last_w: edge(last_w[r], i, dep_latency(code[last_w[r]], ins, code[last_w[r]].kind in ("mfma", "dsread", "vload") and r[0] != 'm'))
            for q in readers.get(r, ()): edge(q, i, dep_latency(code[q], ins, False))
        for r in uses: readers.setdefault(r, []).append(i)
        for r in defs: last_w[r] = i; readers[r] = []
        if ins.kind in VM:
            if last_vm is not None: edge(last_vm, i, 8)
            last_vm = i
        if ins.kind in ("dsread", "dswrite") and "ds" in keep_order:
            if last_ds is not None: edge(last_ds, i, 4)
            last_ds = i
    prio = [0] * n
    for i in reversed(range(n)):
        prio[i] = max([lat + prio[s] for s, lat in succs[i].items()] + [4 * code[i].cost]) + code[i].prio
    out = list(history); base = len(out)
    npred = [len(p) for p in preds]; ready_t = [0] * n
    cand = [i for i in range(n) if npred[i] == 0]
    t = 0; pipe = 0; lastds = -100; stall = 0
    def states_ok(ins):
        dist = 0
        for p in reversed(out):
            if need_states(p, ins) > dist: return False
            dist += states_of(p)
            if dist >= 8: break
        return True
    while cand:
        ok = [i for i in cand if ready_t[i] <= t and states_ok(code[i])]
        mf = [i for i in ok if code[i].kind == "mfma"]
        other = [i for i in ok if code[i].kind != "mfma" and not (code[i].kind in ("dsread", "dswrite") and t - lastds < 12)]
        pick = None
        if mf and pipe <= t: pick = max(mf, key=lambda i: (prio[i], -i))
        elif other:
            room = (pipe - t) if mf else 99
            fit = [i for i in other if 4 * code[i].cost <= room]
            pick = max(fit or other, key=lambda i: (prio[i], -i))
        if pick is None:
            blocked_states = [i for i in cand if ready_t[i] <= t + 4 and not states_ok(code[i])]
            if blocked_states: out.append(I("s_nop 0"))
            t += 4; stall += 4
            continue
        ins = code[pick]; out.append(ins); cand.remove(pick)
        if ins.kind == "mfma": pipe = t + 16
        if ins.kind in ("dsread", "dswrite"): lastds = t
        for s, lat in succs[pick].items():
            ready_t[s] = max(ready_t[s], t + lat); npred[s] -= 1
            if npred[s] == 0: cand.append(s)
        t += 4 * ins.cost
    if verbose: print(f"; list_schedule: {n} instrs, est {t} cycles, idle {stall}")
    return out[base:]
```

```python
import sys, math
from asmlib import *

NAME = "concat_heads__gqa_block_cached__gqa_block_cached__near_ridge"
LDS = 163840
sX, sW, sK, sV, sWo, sWs, sOut, sMisc = 4, 8, 24, 28, 32, 36, 40, 44
sWave = 3
sB, sJ, sBr, sP, sSelLo, sSelHi, sT, sTmp, sXp, sXm, sC, sBlk, sW4k, sTmp2, sFlip, sPb, sTmp3 = range(74, 91)
STAMP0 = 48
def srd(b): return f"s[{b}:{b+3}]"
vWe0, vWe1, vWo0, vWo1, vXa, vXb, vXd, vKd, vVd, vKr, vVr, vTa, vTb, vL16, vL8 = range(1, 16)
WF = 16; STG = 32; ACC = 128
aACC4 = 0; aXF = 32; aK = 72; aV0 = 152; aV1 = 184; aV2 = 216; aONE = 232
XREG = 102400; TSTR = 15360; USZ = 4224

class Opt:
    stamps = False
    kv_mod = "nt"; w_mod = ""; x_mod = ""; wo_mod = ""; part_mod = "sc1"
    kv_issue = {0: 2, 1: 2, 2: 2, 3: 7, 4: 7, 5: 7, 6: 12, 7: 12, 8: 12, 9: 17}
    kv_read = {0: 6, 1: 6, 2: 6, 3: 11, 4: 11, 5: 11, 6: 16, 7: 16, 8: 16, 9: 20}
    x_issue = {0: -1, 1: -1, 2: -1, 3: 1, 4: 5}
    dump = None

def acc(t, mt): return ("v", ACC + 32*mt + 4*t) if mt < 4 else ("a", aACC4 + 4*t)
def reg(kr, n): return vr(kr[0], kr[1], n)

class Gen:
    def __init__(self, o):
        self.o = o; self.P = Prog(); self.nst = 0
    def stamp(self, L=None):
        if not self.o.stamps: return
        i = self.nst; self.nst += 1
        ins = I(f"s_memtime s[{STAMP0+2*i}:{STAMP0+2*i+1}]")
        (self.P.code if L is None else L).append(ins)

    def prologue(self):
        P = self.P; o = self.o
        P("s_cmp_ge_u32 s2, 256\ns_cbranch_scc1 L_end")
        if o.stamps: P("s_memrealtime s[92:93]\ns_memtime s[94:95]")
        P("s_load_dwordx16 s[48:63], s[0:1], 0\ns_load_dwordx8 s[64:71], s[0:1], 64\ns_load_dwordx2 s[72:73], s[0:1], 96")
        P(f"v_lshrrev_b32 v1, 6, v0\nv_and_b32 v0, 63, v0\nv_readfirstlane_b32 s{sWave}, v1")
        P(f"""
        s_lshr_b32 s{sB}, s2, 4
        s_bfe_u32 s{sBr}, s2, 0x10002
        s_and_b32 s{sJ}, s2, 3
        s_lshl_b32 s{sJ}, s{sJ}, 1
        s_bfe_u32 s{sTmp}, s2, 0x10003
        s_add_u32 s{sJ}, s{sJ}, s{sTmp}
        s_mul_i32 s{sTmp}, s{sTmp}, 5
        s_cmp_ge_u32 s{sB}, 10
        s_cselect_b32 s{sFlip}, 1, 0
        s_cselect_b32 s{sTmp2}, 10, 0
        s_sub_u32 s{sPb}, s{sB}, s{sTmp2}
        s_add_u32 s{sP}, s{sPb}, s{sTmp}
        s_sub_u32 s{sTmp2}, s{sP}, 10
        s_cselect_b32 s{sP}, s{sP}, s{sTmp2}
        s_and_b32 s{sTmp}, s{sWave}, 1
        s_add_u32 s{sXp}, s{sP}, s{sTmp}
        s_sub_u32 s{sTmp2}, s{sXp}, 10
        s_cselect_b32 s{sXp}, s{sXp}, s{sTmp2}
        s_lshl_b32 s{sXp}, s{sXp}, 7
        s_lshl_b32 s{sP}, s{sP}, 19
        s_mul_i32 s{sXm}, s{sTmp}, 10240
        s_lshr_b32 s{sTmp}, s{sWave}, 1
        s_mul_i32 s{sTmp2}, s{sTmp}, 5120
        s_add_u32 s{sXm}, s{sXm}, s{sTmp2}
        s_mul_i32 s{sTmp3}, s{sTmp}, 51200
        s_mul_i32 s{sT}, s{sWave}, {TSTR}
        s_add_u32 s{sT}, s{sT}, {XREG}
        s_lshl_b32 s{sW4k}, s{sWave}, 12
        """)
        P(f"""
        v_lshrrev_b32 v16, 4, v0
        v_and_b32 v17, 15, v0
        v_lshrrev_b32 v18, 3, v0
        v_and_b32 v19, 7, v0
        v_and_b32 v20, 6, v18
        v_xor_b32 v20, v19, v20
        v_mul_u32_u24 v21, 1280, v18
        v_lshl_add_u32 v{vXd}, v20, 4, v21
        v_add_u32 v{vXd}, s{sTmp3}, v{vXd}
        v_lshlrev_b32 v21, 16, v16
        v_lshl_add_u32 v21, v17, 4, v21
        s_lshl_b32 s{sTmp}, s{sFlip}, 18
        s_xor_b32 s{sTmp2}, s{sTmp}, 0x40000
        v_add_u32 v{vWe0}, s{sTmp}, v21
        v_add_u32 v{vWo0}, s{sTmp2}, v21
        v_add_u32 v{vWe1}, 0x8000, v{vWe0}
        v_add_u32 v{vWo1}, 0x8000, v{vWo0}
        """)
        P("s_waitcnt lgkmcnt(0)")
        P(f"s_cmp_eq_u32 s{sBr}, 0")
        for i in range(5): P(f"s_cselect_b64 s[{48+2*i}:{49+2*i}], s[{48+2*i}:{49+2*i}], s[{58+2*i}:{59+2*i}]")
        def mk(d, p, off, size):
            P(f"s_add_u32 s{d}, s{p}, {off}\ns_addc_u32 s{d+1}, s{p+1}, 0\ns_mov_b32 s{d+2}, {size}\ns_mov_b32 s{d+3}, 0x20000")
        P(f"s_mul_i32 s{sTmp}, s{sB}, 102400"); mk(sX, 48, f"s{sTmp}", 102400)
        P(f"s_lshl_b32 s{sTmp2}, s{sJ}, 2\ns_add_u32 s{sTmp2}, s{sTmp2}, s{sWave}\ns_lshl_b32 s{sTmp}, s{sTmp2}, 8")
        for j in range(4):
            mk(sW + 4*j, 54, f"s{sTmp}", 640*8192 - 3*8192 - 31*256 )
            if j < 3: P(f"s_add_u32 s{sTmp}, s{sTmp}, 8192")
        self.xgroup(0, P.code)
        self.wloads(0, P.code)
        self.wloads(1, P.code)
        for g in range(1, 5):
            if o.x_issue[g] < 0: self.xgroup(g, P.code)
        self.wloads(2, P.code)
        P(f"s_lshl_b32 s{sTmp}, s{sB}, 5\ns_add_u32 s{sTmp}, s{sTmp}, s{sTmp2}\ns_mul_i32 s{sTmp}, s{sTmp}, 20480")
        mk(sK, 50, f"s{sTmp}", 20480); mk(sV, 52, f"s{sTmp}", 20480)
        P(f"s_mul_i32 s{sTmp}, s{sJ}, 655360"); mk(sWo, 56, f"s{sTmp}", 655360)
        P(f"""
        s_lshl_b32 s{sTmp}, s{sBr}, 4
        s_add_u32 s{sTmp}, s{sTmp}, s{sB}
        s_lshl_b32 s{sTmp}, s{sTmp}, 3
        s_add_u32 s{sTmp}, s{sTmp}, s{sJ}
        s_mul_i32 s{sTmp}, s{sTmp}, 102400
        s_mul_i32 s{sTmp2}, s{sWave}, 2560
        s_add_u32 s{sTmp}, s{sTmp}, s{sTmp2}
        """)
        mk(sWs, 72, f"s{sTmp}", 102400 - 3*2560)
        if o.stamps or o.dump:
            mk(sMisc, 72, 0x8000000, 0x8000000)
        P(f"s_mov_b32 s{sSelLo}, 0x05040100\ns_mov_b32 s{sSelHi}, 0x07060302")
        c = math.log2(math.e) / math.sqrt(128.0)
        import struct
        P(f"s_mov_b32 s{sC}, {hex(struct.unpack('<I', struct.pack('<f', c))[0])}")
        P(f"""
        s_add_u32 s{sBlk}, s{sJ}, s{sPb}
        s_add_u32 s{sBlk}, s{sBlk}, 1
        s_sub_u32 s{sTmp}, s{sBlk}, 10
        s_cselect_b32 s{sBlk}, s{sBlk}, s{sTmp}
        s_mul_i32 s{sPb}, s{sBlk}, 10240
        s_lshl_b32 s{sBlk}, s{sBlk}, 7
        """)
        P(f"""
        v_and_b32 v20, 6, v17
        v_xor_b32 v20, v16, v20
        v_lshlrev_b32 v21, 7, v17
        v_lshl_add_u32 v21, v20, 4, v21
        s_lshl_b32 s{sTmp}, s{sFlip}, 6
        v_xor_b32 v{vXa}, s{sTmp}, v21
        v_xor_b32 v{vXb}, 64, v{vXa}
        v_xor_b32 v20, v17, v16
        v_lshlrev_b32 v21, 8, v16
        v_lshl_add_u32 v{vKd}, v20, 4, v21
        v_lshlrev_b32 v20, 1, v16
        v_xor_b32 v20, v17, v20
        v_lshl_add_u32 v{vVd}, v20, 4, v21
        v_lshrrev_b32 v22, 2, v17
        v_and_b32 v23, 3, v17
        v_and_b32 v24, 1, v22
        v_lshrrev_b32 v25, 1, v22
        v_mul_u32_u24 v24, 2176, v24
        v_lshl_add_u32 v24, v25, 10, v24
        v_mul_u32_u24 v25, 272, v23
        v_add_u32 v24, v24, v25
        v_lshl_add_u32 v24, v16, 6, v24
        v_add_u32 v{vKr}, s{sT}, v24
        v_and_b32 v24, 1, v16
        v_lshrrev_b32 v25, 1, v16
        v_mul_u32_u24 v24, 2176, v24
        v_lshl_add_u32 v24, v25, 10, v24
        v_mul_u32_u24 v25, 288, v22
        v_add_u32 v24, v24, v25
        v_lshl_add_u32 v24, v23, 3, v24
        v_add_u32 v{vVr}, s{sT}, v24
        v_lshlrev_b32 v{vL16}, 4, v0
        v_lshlrev_b32 v{vL8}, 3, v0
        v_mov_b32 v20, 0x3f803f80
        """)
        for i in range(4): P(f"v_accvgpr_write_b32 a{aONE+i}, v20")

    def xgroup(self, g, L):
        for e in range(5):
            if e % 4 == 0: L.append(I(f"s_add_u32 m0, s{sXm}, {g*20480 + e*1024}"))
            L.append(I(f"s_add_u32 s{sTmp3}, s{sXp}, {e*10240 - (e%4)*1024}"))
            L.append(I(f"buffer_load_dwordx4 v{vXd}, {srd(sX)}, s{sTmp3} offen offset:{(e%4)*1024} {self.o.x_mod} lds", tag=f"x{g}"))
        if g < 4:
            L.append(I(f"s_add_u32 s{sXp}, s{sXp}, 256"))
            L.append(I(f"s_sub_u32 s{sTmp3}, s{sXp}, 1280"))
            L.append(I(f"s_cselect_b32 s{sXp}, s{sXp}, s{sTmp3}"))
    def wloads(self, i, L):
        base = STG + 32 * (i % 3)
        for j in range(8):
            va = (vWe0, vWe1)[j >> 2] if i % 2 == 0 else (vWo0, vWo1)[j >> 2]
            L.append(I(f"buffer_load_dwordx4 {vr('v', base + 4*j, 4)}, v{va}, {srd(sW + 4*(j&3))}, s{sP} offen {self.o.w_mod}", tag=f"w{i}"))
        if i % 2 == 1 and i < 19:
            L.append(I(f"s_add_u32 s{sP}, s{sP}, 0x80000"))
            L.append(I(f"s_sub_u32 s{sTmp}, s{sP}, 0x500000"))
            L.append(I(f"s_cselect_b32 s{sP}, s{sP}, s{sTmp}"))
    def perms(self, i, p):
        base = STG + 32 * (i % 3); L = []
        for hb in range(2):
            for q in range(4):
                L.append(I(f"v_perm_b32 v{WF + 8*(p&1) + 4*hb + q}, v{base + 4*(2*q+1) + p}, v{base + 4*(2*q) + p}, s{(sSelLo, sSelHi)[hb]}"))
        return L
    def xreads(self, i):
        va = vXa if i % 2 == 0 else vXb
        return [I(f"ds_read_b128 {vr('a', aXF + 20*(i%2) + 4*mt, 4)}, v{va} offset:{((i>>1)%5)*10240 + mt*2048}", tag=f"xr{i}") for mt in range(5)]
    def kv_dma(self, u):
        isv = u >= 5; kt = u - 5 if isv else u; slot = u % 3
        s = srd(sV if isv else sK); va = vVd if isv else vKd; m = self.o.kv_mod
        L = []
        if u >= 3: L.append(I(f"WAITLG kvr{u-3}"))
        L += [I(f"s_add_u32 m0, s{sT}, {slot*USZ}"), I(f"s_mov_b32 s{sTmp2}, {kt*4096}")]
        for e in range(4):
            if e == 2: L.append(I(f"s_add_u32 m0, s{sT}, {slot*USZ + 128}"))
            L.append(I(f"buffer_load_dwordx4 v{va}, {s}, s{sTmp2} offen offset:{1024*e} {m} lds", tag=f"kv{u}"))
        return L
    def kv_reads(self, units):
        L = [I("WAITVM " + " ".join(f"kv{u}" for u in units), mem_w=["T"])]
        ku = [u for u in units if u < 5]; vu = [u for u in units if u >= 5]
        for s in range(4):
            if not ku: break
            va = vKr
            if s: L.append(I(f"v_xor_b32 v{vTa}, {16*s}, v{vKr}")); va = vTa
            for u in ku:
                L.append(I(f"ds_read_b128 {vr('a', aK + 16*u + 4*s, 4)}, v{va} offset:{(u%3)*USZ}", tag=f"kvr{u}", mem_r=["T"]))
        for tl in range(4):
            if not vu: break
            va = vVr
            if tl: L.append(I(f"v_xor_b32 v{vTb}, {32*tl}, v{vVr}")); va = vTb
            for u in vu:
                kt = u - 5
                for th in range(2):
                    T = tl + 4*th
                    d = (aV0, aV1)[kt >> 1] + 4*T + 2*(kt & 1) if kt < 4 else aV2 + 2*T
                    L.append(I(f"ds_read_b64_tr_b16 {vr('a', d, 2)}, v{va} offset:{(u%3)*USZ + 128*th}", tag=f"kvr{u}", mem_r=["T"]))
        return L
    def wo_dma(self, n):
        r, q = divmod(n, 4); L = []
        L.append(I(f"s_add_u32 m0, s{sW4k}, {(n%5)*16384}"))
        L.append(I(f"s_add_u32 s{sTmp2}, s{sBlk}, {q*163840}"))
        for e in range(4):
            L.append(I(f"buffer_load_dwordx4 v{1+e}, {srd(sWo)}, s{sTmp2} offen offset:{1024*e} {self.o.wo_mod} lds", tag=f"wo{n}"))
        if q == 3 and r < 9:
            L += [I(f"s_add_u32 s{sBlk}, s{sBlk}, 128"), I(f"s_sub_u32 s{sTmp}, s{sBlk}, 1280"), I(f"s_cselect_b32 s{sBlk}, s{sBlk}, s{sTmp}")]
        return L

    def qproj(self):
        P = self.P; o = self.o
        P("WAITVM x0\ns_barrier")
        P.add(self.xreads(0)); P.add(self.perms(0, 0))
        self.stamp()
        M = []
        for i in range(20):
            for p in range(4):
                for mt in range(5):
                    for hb in range(2):
                        t = 2*p + hb; c = reg(acc(t, mt), 4)
                        M.append(I(f"v_mfma_f32_16x16x32_bf16 {c}, {vr('v', WF + 8*(p&1) + 4*hb, 4)}, {vr('a', aXF + 20*(i%2) + 4*mt, 4)}, {c if i else 0}"))
        S = Slots(M)
        def seq(L, lo, hi, step=0.0):
            p = lo
            for k, ins in enumerate(L):
                p = S.put(max(p, int(lo + k*step)), ins, hi)
            return p
        for i in range(20):
            b = 40*i
            for p in range(4):
                ni, np_ = (i, p+1) if p < 3 else (i+1, 0)
                if ni >= 20: continue
                if np_ == 0: S.put(b + 29, I(f"WAITVM w{ni}"), b + 29)
                seq(self.perms(ni, np_), b + 10*p, b + 10*p + 3, 0.5)
            if i < 19: S.put(b + 39, I(f"WAITLG xr{i+1}"), b + 39)
        for i in range(19):
            b = 40*i; L = self.xreads(i+1); lo = b + 4
            if (i+1) % 4 == 0:
                S.put(lo, I(f"WAITVM x{(i+1)//4}"), lo); S.put(lo, I("s_barrier"), lo); lo += 1
            if i + 1 == 10: S.put(lo, I(f"v_add_u32 v{vXa}, 51200, v{vXa}"), lo)
            if i + 1 == 11: S.put(lo, I(f"v_add_u32 v{vXb}, 51200, v{vXb}"), lo)
            S.put(lo, L[0], lo)
            for k in range(1, 5): S.put(b + 4 + 5*k, L[k], b + 4 + 5*k)
        vm = []
        for i in range(3, 20):
            L = []; self.wloads(i, L)
            lo = 40*(i-3) + 30
            for k, ins in enumerate(L): vm.append((lo + 5 + 10*(min(k,7)//2) + 2*(min(k,7)&1), 0, ins, 40*(i-1) + 10))
        for g in range(5):
            if o.x_issue[g] >= 0:
                L = []; self.xgroup(g, L)
                for ins in L: vm.append((40*o.x_issue[g] + 4, 1, ins, None))
        for u in range(10):
            for ins in self.kv_dma(u): vm.append((40*o.kv_issue[u] + 4, 2, ins, None))
        vm.sort(key=lambda x: (x[0], x[1]))
        p = 0
        for lo, _, ins, hi in vm:
            p = S.put(max(p, lo), ins, None if hi is None else max(hi, p))
        for st in sorted(set(o.kv_read.values())):
            if st >= 20: continue
            seq(self.kv_reads([u for u in range(10) if o.kv_read[u] == st]), 40*st, 40*st + 38, 1)
        S.put(40*19 + 4, I("s_barrier"))
        P.add(S.emit())
        print("; qproj slot overflows:", S.over, file=sys.stderr)
        self.stamp()

    def attention(self):
        P = self.P; o = self.o; L = []
        A = lambda t, **kw: L.append(I(t, **kw))
        late = [u for u in range(10) if o.kv_read[u] >= 20]
        A("v_lshrrev_b32 v5, 3, v0"); A("v_and_b32 v6, 7, v0"); A("v_lshrrev_b32 v7, 4, v0"); A("v_lshlrev_b32 v7, 1, v7")
        A("v_xor_b32 v6, v6, v7"); A("v_mul_u32_u24 v5, 1280, v5"); A("v_lshl_add_u32 v1, v6, 4, v5")
        A(f"s_mul_i32 s{sTmp}, s{sWave}, 40960"); A(f"v_add_u32 v1, s{sTmp}, v1")
        for e in range(1, 4): A(f"v_add_u32 v{1+e}, {e*9216}, v1")
        A(f"v_add_u32 v5, s{sT}, v{vL16}")
        A(f"s_mul_i32 s{sTmp}, s{sWave}, 5120"); A(f"s_add_u32 s{sTmp}, s{sTmp}, 81920"); A(f"v_add_u32 v6, s{sTmp}, v{vL16}")
        for n in range(5): L += self.wo_dma(n)
        R = lambda mt, k: (ACC + 32*mt + k) if mt < 4 else (112 + k if k < 16 else k)
        Q = lambda mt: STG + 16*mt
        for mt in range(5):
            if mt == 4:
                for k in range(32): A(f"v_accvgpr_read_b32 v{R(4,k)}, a{aACC4+k}")
            for s in range(4):
                for e in range(4):
                    A(f"v_cvt_pk_bf16_f32 v{Q(mt)+4*s+e}, v{R(mt, 8*e+s)}, v{R(mt, 8*e+4+s)}")
            if o.dump == "q": continue
            for s in range(4):
                for kt in range(5):
                    c = vr('v', R(mt, 4*kt), 4)
                    A(f"v_mfma_f32_16x16x32_bf16 {c}, {vr('a', aK+16*kt+4*s, 4)}, {vr('v', Q(mt)+4*s, 4)}, {c if s else 0}")
            m0, m1, m2 = R(mt, 20), R(mt, 21), R(mt, 22)
            A(f"v_max3_f32 v{m0}, v{R(mt,0)}, v{R(mt,1)}, v{R(mt,2)}")
            A(f"v_max3_f32 v{m1}, v{R(mt,3)}, v{R(mt,4)}, v{R(mt,5)}")
            for k in range(6, 20, 2):
                d = (m0, m1)[(k//2) & 1]
                A(f"v_max3_f32 v{d}, v{d}, v{R(mt,k)}, v{R(mt,k+1)}")
            A(f"v_max_f32 v{m0}, v{m0}, v{m1}")
            for sw in ("32", "16"):
                A(f"v_mov_b32 v{m1}, v{m0}"); A(f"v_permlane{sw}_swap_b32 v{m0}, v{m1}"); A(f"v_max_f32 v{m0}, v{m0}, v{m1}")
            A(f"v_mul_f32 v{m0}, s{sC}, v{m0}")
            for k in range(20):
                A(f"v_fma_f32 v{R(mt,k)}, v{R(mt,k)}, s{sC}, -v{m0}")
                A(f"v_exp_f32 v{R(mt,k)}, v{R(mt,k)}")
            for k in range(10): A(f"v_cvt_pk_bf16_f32 v{Q(mt)+k}, v{R(mt,2*k)}, v{R(mt,2*k+1)}")
        if late: L += self.kv_reads(late)
        for mt in range(5):
            if o.dump == "q": break
            sm = vr('v', Q(mt)+12, 4)
            for u in range(3):
                n = 4 if u < 2 else 2; op = "v_mfma_f32_16x16x32_bf16" if u < 2 else "v_mfma_f32_16x16x16_bf16"
                pb = vr('v', Q(mt)+4*u, n)
                A(f"{op} {sm}, {vr('a', aONE, n)}, {pb}, {sm if u else 0}")
                for T in range(8):
                    c = vr('v', R(mt, 4*T), 4)
                    A(f"{op} {c}, {vr('a', (aV0, aV1, aV2)[u] + n*T, n)}, {pb}, {c if u else 0}")
            A(f"v_rcp_f32 v{Q(mt)+12}, v{Q(mt)+12}")
            for s in range(4):
                for k in range(8): A(f"v_mul_f32 v{R(mt,8*s+k)}, v{R(mt,8*s+k)}, v{Q(mt)+12}")
                for k in range(4): A(f"v_cvt_pk_bf16_f32 v{R(mt,8*s+k)}, v{R(mt,8*s+2*k)}, v{R(mt,8*s+2*k+1)}")
                f = 4*mt + s
                A(f"ds_write_b128 v{5 if f < 15 else 6}, {vr('v', R(mt,8*s), 4)} offset:{1024*(f if f < 15 else f-15)}", mem_w=["T"] if f == 0 else [], mem_r=["T"])
        P.add(list_schedule(L, history=P.code[-10:], verbose=True))
        self.stamp()

    def outproj(self):
        P = self.P; o = self.o
        OA = 128; WR = 148; PK = 164
        F = lambda q, mt, s: (lambda n: ('a', 4*n) if n < 64 else ('v', 192 + 4*(n-64)))(q*20 + mt*4 + s)
        P(f"""
        v_lshrrev_b32 v16, 2, v0
        v_lshrrev_b32 v17, 3, v0
        v_and_b32 v17, 3, v17
        v_xor_b32 v17, s{sWave}, v17
        v_and_b32 v18, 3, v0
        v_lshlrev_b32 v16, 7, v16
        v_lshl_add_u32 v16, v17, 5, v16
        v_lshl_add_u32 v7, v18, 3, v16
        v_add_u32 v8, 0x10000, v7
        v_add_u32 v9, {XREG}, v{vL16}
        v_add_u32 v10, 81920, v{vL16}
        WAITVM wo0
        s_waitcnt lgkmcnt(0)
        s_barrier
        """)
        self.stamp()
        def oread(q, mt, s):
            f = 4*mt + s
            a = f"v9 offset:{TSTR*q + 1024*f}" if f < 15 else f"v10 offset:{5120*q + 1024*(f-15)}"
            return I(f"ds_read_b128 {reg(F(q,mt,s),4)}, {a}")
        def wread(k):
            n, s = divmod(k, 4); pos = n % 5
            return [I(f"ds_read_b64_tr_b16 {vr('v', WR + 4*(k%4) + 2*hh, 2)}, v{8 if pos == 4 else 7} offset:{(pos%4)*16384 + s*4096 + hh*2048}") for hh in range(2)]
        def flush(r):
            cv = [[I(f"v_cvt_pk_bf16_f32 v{PK+2*mt+h}, v{OA+4*mt+2*h}, v{OA+4*mt+2*h+1}") for h in range(2)] for mt in range(5)]
            st = [I(f"buffer_store_dwordx4 {vr('v', PK, 4)}, v{vL16}, {srd(sWs)}, s{sPb} offen {o.part_mod}", tag=f"ps{r}"),
                  I(f"buffer_store_dwordx4 {vr('v', PK+4, 4)}, v{vL16}, {srd(sWs)}, s{sPb} offen offset:1024 {o.part_mod}", tag=f"ps{r}"),
                  I(f"buffer_store_dwordx2 {vr('v', PK+8, 2)}, v{vL8}, {srd(sWs)}, s{sPb} offen offset:2048 {o.part_mod}", tag=f"ps{r}"),
                  I(f"s_add_u32 s{sPb}, s{sPb}, 10240"), I(f"s_sub_u32 s{sTmp3}, s{sPb}, 102400"), I(f"s_cselect_b32 s{sPb}, s{sPb}, s{sTmp3}")]
            return cv, st
        P.add(wread(0)); P.add([oread(0, mt, 0) for mt in range(5)]); P.add(wread(1)); P.add([oread(0, mt, 1) for mt in range(5)])
        M = []
        for k in range(160):
            q, s = (k // 4) % 4, k % 4
            for mt in range(5):
                c = vr('v', OA + 4*mt, 4)
                M.append(I(f"v_mfma_f32_16x16x32_bf16 {c}, {vr('v', WR + 4*(k%4), 4)}, {reg(F(q,mt,s),4)}, {c if k % 16 else 0}"))
        S = Slots(M)
        stores = {}
        for r in range(9):
            cv, st = flush(r)
            for mt in range(5):
                for ins in cv[mt]: S.put(80*r + 79 + mt, ins, 80*r + 79 + mt)
            stores[r] = st
        vm = []
        for k in range(158):
            b = 5*k; lo = b
            if (k + 2) % 4 == 0:
                n = k // 4
                p = S.put(b, I(f"WAITVM wo{n+1}"), b); p = S.put(b, I("s_barrier"), b); lo = b + 1
                if n >= 1 and n + 4 < 40:
                    for j, ins in enumerate(self.wo_dma(n + 4)): vm.append((b + 1 + max(0, 4*(min(j,5)-2)), ins))
            L = wread(k + 2)
            if k + 2 < 16: L += [oread((k+2)//4, mt, (k+2)%4) for mt in range(5)]
            p = lo
            for ins in L: p = S.put(p, ins, b + 4)
        for r in range(9):
            for j, ins in enumerate(stores[r]): vm.append((80*r + 85 + min(j, 2), ins))
        vm.sort(key=lambda x: x[0])
        p = 0
        for lo, ins in vm: p = S.put(max(p, lo), ins)
        P.add(S.emit())
        print("; outproj slot overflows:", S.over, file=sys.stderr)
        cv, st = flush(9)
        for mt in range(5): P.add(cv[mt])
        P.add(st[:3])
        self.stamp()

    def dump_regs(self, regs):
        P = self.P
        P(f"s_waitcnt vmcnt(0) lgkmcnt(0)\ns_lshl_b32 s{sTmp}, s2, 2\ns_add_u32 s{sTmp}, s{sTmp}, s{sWave}\ns_mul_i32 s{sTmp}, s{sTmp}, {len(regs)*256}\nv_lshlrev_b32 v1, 2, v0")
        for r in regs:
            P(f"buffer_store_dword {r}, v1, {srd(sMisc)}, s{sTmp} offen\ns_add_u32 s{sTmp}, s{sTmp}, 256\ns_waitcnt vmcnt(0)")

    def finish(self):
        P = self.P
        if self.o.stamps:
            P("s_waitcnt vmcnt(0)"); self.stamp()
            P("s_memrealtime s[96:97]\ns_waitcnt lgkmcnt(0)")
            P(f"s_lshl_b32 s{sTmp}, s2, 2\ns_add_u32 s{sTmp}, s{sTmp}, s{sWave}\ns_lshl_b32 s{sTmp}, s{sTmp}, 7\nv_mov_b32 v1, 0\ns_mov_b64 exec, 1")
            src = [92, 96, 94] + [STAMP0 + 2*i for i in range(self.nst)]
            for k, s in enumerate(src):
                P(f"v_mov_b32 v2, s{s}\nbuffer_store_dword v2, v1, {srd(sMisc)}, s{sTmp} offen offset:{4*k}")
        P("L_end:\ns_endpgm")

    def build(self):
        o = self.o
        self.prologue(); self.qproj(); self.attention()
        if o.dump == "q": self.dump_regs([f"v{STG+k}" for k in range(80)])
        elif o.dump == "o":
            R = lambda mt, k: (ACC + 32*mt + k) if mt < 4 else (112 + k if k < 16 else k)
            self.dump_regs([f"v{R(mt, 8*s+k)}" for mt in range(5) for s in range(4) for k in range(4)])
        else: self.outproj()
        self.finish()
        wl = []; nl = []
        code, _, _ = insert_waits(self.P.code, log=wl)
        code = insert_nops(code, log=nl)
        print(f"; auto waits {len(wl)}, auto nops {len(nl)} ({sum(n for n,_ in nl)} states)", file=sys.stderr)
        self.wl, self.nl = wl, nl
        Q = Prog(); Q.code = code
        return Q.text()

def reduce_kernel():
    P = Prog()
    P("s_cmp_ge_u32 s2, 320\ns_cbranch_scc1 L_rend")
    P("s_load_dwordx2 s[4:5], s[0:1], 80\ns_load_dwordx2 s[6:7], s[0:1], 96")
    P("v_lshrrev_b32 v1, 6, v0\nv_and_b32 v0, 63, v0\nv_readfirstlane_b32 s3, v1")
    P("""
    s_mul_i32 s16, s2, 6554
    s_lshr_b32 s16, s16, 16
    s_mul_i32 s17, s16, 10
    s_sub_u32 s17, s2, s17
    s_lshl_b32 s17, s17, 2
    s_add_u32 s17, s17, s3
    s_mul_i32 s18, s16, 819200
    s_mul_i32 s19, s17, 2560
    s_add_u32 s18, s18, s19
    v_lshlrev_b32 v2, 4, v0
    v_lshlrev_b32 v3, 3, v0
    s_waitcnt lgkmcnt(0)
    s_mov_b32 s8, s6
    s_mov_b32 s9, s7
    s_mov_b32 s10, 26214400
    s_mov_b32 s11, 0x20000
    s_mov_b32 s12, s4
    s_mov_b32 s13, s5
    s_mov_b32 s14, 3276800
    s_mov_b32 s15, 0x20000
    """)
    for s in range(8):
        b = 32 + 12*s
        P(f"buffer_load_dwordx4 v[{b}:{b+3}], v2, s[8:11], s18 offen")
        P(f"buffer_load_dwordx4 v[{b+4}:{b+7}], v2, s[8:11], s18 offen offset:1024")
        P(f"buffer_load_dwordx2 v[{b+8}:{b+9}], v3, s[8:11], s18 offen offset:2048")
        P("s_add_u32 s18, s18, 102400")
    P("""
    s_and_b32 s19, s16, 15
    s_lshr_b32 s20, s16, 4
    s_mul_i32 s19, s19, 204800
    s_mul_i32 s20, s20, 1280
    s_add_u32 s19, s19, s20
    s_lshl_b32 s20, s17, 5
    s_add_u32 s19, s19, s20
    v_and_b32 v4, 15, v0
    v_lshrrev_b32 v5, 4, v0
    v_mul_u32_u24 v4, 2560, v4
    v_lshl_add_u32 v4, v5, 3, v4
    """)
    for s in range(8):
        b = 32 + 12*s
        for k in range(10):
            if s == 0:
                P(f"v_lshlrev_b32 v{8+2*k}, 16, v{b+k}\nv_and_b32 v{9+2*k}, 0xffff0000, v{b+k}")
            else:
                P(f"v_lshlrev_b32 v6, 16, v{b+k}\nv_and_b32 v7, 0xffff0000, v{b+k}\nv_add_f32 v{8+2*k}, v{8+2*k}, v6\nv_add_f32 v{9+2*k}, v{9+2*k}, v7")
    for mt in range(5):
        P(f"v_cvt_pk_bf16_f32 v{32+2*mt}, v{8+4*mt}, v{9+4*mt}\nv_cvt_pk_bf16_f32 v{33+2*mt}, v{10+4*mt}, v{11+4*mt}")
        P(f"buffer_store_dwordx2 v[{32+2*mt}:{33+2*mt}], v4, s[12:15], s19 offen\ns_add_u32 s19, s19, 40960")
    P("L_rend:\ns_endpgm")
    code, _, _ = insert_waits(P.code); code = insert_nops(code)
    Q = Prog(); Q.code = code
    return Q.text()

def desc(name, vgpr, accum):
    return f""".amdhsa_kernel {name}
  .amdhsa_next_free_vgpr {vgpr}
  .amdhsa_next_free_sgpr 102
  .amdhsa_accum_offset {accum}
  .amdhsa_group_segment_fixed_size 0
  .amdhsa_kernarg_size 104
  .amdhsa_user_sgpr_count 2
  .amdhsa_user_sgpr_kernarg_segment_ptr 1
  .amdhsa_system_sgpr_workgroup_id_x 1
  .amdhsa_float_denorm_mode_32 3
.end_amdhsa_kernel
"""
def full(o):
    g = Gen(o); body = g.build()
    main = NAME + "_kernel"
    t = f"; @launch kernel={main} grid=(256,1,1) block=(256,1,1) lds={LDS}\n; @launch kernel=reduce_kernel grid=(320,1,1) block=(256,1,1) lds=0\n"
    t += '.amdgcn_target "amdgcn-amd-amdhsa--gfx950"\n.text\n'
    t += f".globl {main}\n.p2align 8\n.type {main},@function\n{main}:\n" + body
    t += ".globl reduce_kernel\n.p2align 8\n.type reduce_kernel,@function\nreduce_kernel:\n" + reduce_kernel()
    t += '.section .rodata,"a"\n.p2align 6\n' + desc(main, 512, 256) + ".p2align 6\n" + desc("reduce_kernel", 128, 128)
    return t, g

if __name__ == "__main__":
    o = Opt()
    out = sys.argv[1]
    for a in sys.argv[2:]:
        k, v = a.split("=", 1); setattr(o, k, eval(v))
    t, g = full(o)
    open(out, "w").write(t)
```

```python
import sys, math
from asmlib import *

NAME = "concat_heads__gqa_block_cached__gqa_block_cached__near_ridge"
LDS = 163840
sX, sW, sK, sV, sWo, sWs, sOut, sMisc = 4, 8, 24, 28, 32, 36, 40, 44
sWave = 3
sB, sJ, sBr, sP, sSelLo, sSelHi, sT, sTmp, sXp, sXm, sC, sBlk, sW4k, sTmp2, sFlip, sPb, sTmp3 = range(74, 91)
STAMP0 = 48
def srd(b): return f"s[{b}:{b+3}]"
vWe0, vWe1, vWo0, vWo1, vXa, vXb, vXd, vKd, vVd, vKr, vVr, vTa, vTb, vL16, vL8 = range(1, 16)
WF = 16; STG = 32; ACC = 128
aACC4 = 0; aXF = 32; aK = 72; aV0 = 152; aV1 = 184; aV2 = 216; aONE = 232
XREG = 102400; TSTR = 15360; USZ = 4224

class Opt:
    stamps = False
    kv_mod = "nt"; w_mod = ""; x_mod = ""; wo_mod = ""; part_mod = "sc1"
    kv_issue = {0: 2, 1: 2, 2: 2, 3: 7, 4: 7, 5: 7, 6: 12, 7: 12, 8: 12, 9: 17}
    kv_read = {0: 6, 1: 6, 2: 6, 3: 11, 4: 11, 5: 11, 6: 16, 7: 16, 8: 16, 9: 20}
    x_issue = {0: -1, 1: -1, 2: -1, 3: 1, 4: 5}
    dump = None
    probe = None

def acc(t, mt): return ("v", ACC + 32*mt + 4*t) if mt < 4 else ("a", aACC4 + 4*t)
def reg(kr, n): return vr(kr[0], kr[1], n)

class Gen:
    def __init__(self, o):
        self.o = o; self.P = Prog(); self.nst = 0
    def stamp(self, L=None):
        if self.o.probe is not None:
            if self.nst == self.o.probe: self.P("s_memrealtime s[94:95]")
            self.nst += 1
        if not self.o.stamps: return
        i = self.nst; self.nst += 1
        ins = I(f"s_memtime s[{STAMP0+2*i}:{STAMP0+2*i+1}]")
        (self.P.code if L is None else L).append(ins)

    def prologue(self):
        P = self.P; o = self.o
        P("s_cmp_ge_u32 s2, 256\ns_cbranch_scc1 L_end")
        if o.stamps: P("s_memrealtime s[92:93]\ns_memtime s[94:95]")
        if o.probe is not None: P("s_memrealtime s[92:93]\ns_memrealtime s[94:95]")
        P("s_load_dwordx16 s[48:63], s[0:1], 0\ns_load_dwordx8 s[64:71], s[0:1], 64\ns_load_dwordx2 s[72:73], s[0:1], 96")
        P(f"v_lshrrev_b32 v1, 6, v0\nv_and_b32 v0, 63, v0\nv_readfirstlane_b32 s{sWave}, v1")
        P(f"""
        s_lshr_b32 s{sB}, s2, 4
        s_bfe_u32 s{sBr}, s2, 0x10002
        s_and_b32 s{sJ}, s2, 3
        s_lshl_b32 s{sJ}, s{sJ}, 1
        s_bfe_u32 s{sTmp}, s2, 0x10003
        s_add_u32 s{sJ}, s{sJ}, s{sTmp}
        s_mul_i32 s{sTmp}, s{sTmp}, 5
        s_cmp_ge_u32 s{sB}, 10
        s_cselect_b32 s{sFlip}, 1, 0
        s_cselect_b32 s{sTmp2}, 10, 0
        s_sub_u32 s{sPb}, s{sB}, s{sTmp2}
        s_add_u32 s{sP}, s{sPb}, s{sTmp}
        s_sub_u32 s{sTmp2}, s{sP}, 10
        s_cselect_b32 s{sP}, s{sP}, s{sTmp2}
        s_and_b32 s{sTmp}, s{sWave}, 1
        s_add_u32 s{sXp}, s{sP}, s{sTmp}
        s_sub_u32 s{sTmp2}, s{sXp}, 10
        s_cselect_b32 s{sXp}, s{sXp}, s{sTmp2}
        s_lshl_b32 s{sXp}, s{sXp}, 7
        s_lshl_b32 s{sP}, s{sP}, 19
        s_mul_i32 s{sXm}, s{sTmp}, 10240
        s_lshr_b32 s{sTmp}, s{sWave}, 1
        s_mul_i32 s{sTmp2}, s{sTmp}, 5120
        s_add_u32 s{sXm}, s{sXm}, s{sTmp2}
        s_mul_i32 s{sTmp3}, s{sTmp}, 51200
        s_mul_i32 s{sT}, s{sWave}, {TSTR}
        s_add_u32 s{sT}, s{sT}, {XREG}
        s_lshl_b32 s{sW4k}, s{sWave}, 12
        """)
        P(f"""
        v_lshrrev_b32 v16, 4, v0
        v_and_b32 v17, 15, v0
        v_lshrrev_b32 v18, 3, v0
        v_and_b32 v19, 7, v0
        v_and_b32 v20, 6, v18
        v_xor_b32 v20, v19, v20
        v_mul_u32_u24 v21, 1280, v18
        v_lshl_add_u32 v{vXd}, v20, 4, v21
        v_add_u32 v{vXd}, s{sTmp3}, v{vXd}
        v_lshlrev_b32 v21, 16, v16
        v_lshl_add_u32 v21, v17, 4, v21
        s_lshl_b32 s{sTmp}, s{sFlip}, 18
        s_xor_b32 s{sTmp2}, s{sTmp}, 0x40000
        v_add_u32 v{vWe0}, s{sTmp}, v21
        v_add_u32 v{vWo0}, s{sTmp2}, v21
        v_add_u32 v{vWe1}, 0x8000, v{vWe0}
        v_add_u32 v{vWo1}, 0x8000, v{vWo0}
        """)
        P("s_waitcnt lgkmcnt(0)")
        P(f"s_cmp_eq_u32 s{sBr}, 0")
        for i in range(5): P(f"s_cselect_b64 s[{48+2*i}:{49+2*i}], s[{48+2*i}:{49+2*i}], s[{58+2*i}:{59+2*i}]")
        def mk(d, p, off, size):
            P(f"s_add_u32 s{d}, s{p}, {off}\ns_addc_u32 s{d+1}, s{p+1}, 0\ns_mov_b32 s{d+2}, {size}\ns_mov_b32 s{d+3}, 0x20000")
        P(f"s_mul_i32 s{sTmp}, s{sB}, 102400"); mk(sX, 48, f"s{sTmp}", 102400)
        P(f"s_lshl_b32 s{sTmp2}, s{sJ}, 2\ns_add_u32 s{sTmp2}, s{sTmp2}, s{sWave}\ns_lshl_b32 s{sTmp}, s{sTmp2}, 8")
        for j in range(4):
            mk(sW + 4*j, 54, f"s{sTmp}", 640*8192 - 3*8192 - 31*256 )
            if j < 3: P(f"s_add_u32 s{sTmp}, s{sTmp}, 8192")
        self.xgroup(0, P.code)
        self.wloads(0, P.code)
        self.wloads(1, P.code)
        for g in range(1, 5):
            if o.x_issue[g] < 0: self.xgroup(g, P.code)
        self.wloads(2, P.code)
        P(f"s_lshl_b32 s{sTmp}, s{sB}, 5\ns_add_u32 s{sTmp}, s{sTmp}, s{sTmp2}\ns_mul_i32 s{sTmp}, s{sTmp}, 20480")
        mk(sK, 50, f"s{sTmp}", 20480); mk(sV, 52, f"s{sTmp}", 20480)
        P(f"s_mul_i32 s{sTmp}, s{sJ}, 655360"); mk(sWo, 56, f"s{sTmp}", 655360)
        P(f"""
        s_lshl_b32 s{sTmp}, s{sBr}, 4
        s_add_u32 s{sTmp}, s{sTmp}, s{sB}
        s_lshl_b32 s{sTmp}, s{sTmp}, 3
        s_add_u32 s{sTmp}, s{sTmp}, s{sJ}
        s_mul_i32 s{sTmp}, s{sTmp}, 102400
        s_mul_i32 s{sTmp2}, s{sWave}, 2560
        s_add_u32 s{sTmp}, s{sTmp}, s{sTmp2}
        """)
        mk(sWs, 72, f"s{sTmp}", 102400 - 3*2560)
        if o.stamps or o.dump:
            mk(sMisc, 72, 0x8000000, 0x8000000)
        P(f"s_mov_b32 s{sSelLo}, 0x05040100\ns_mov_b32 s{sSelHi}, 0x07060302")
        c = math.log2(math.e) / math.sqrt(128.0)
        import struct
        P(f"s_mov_b32 s{sC}, {hex(struct.unpack('<I', struct.pack('<f', c))[0])}")
        P(f"""
        s_add_u32 s{sBlk}, s{sJ}, s{sPb}
        s_add_u32 s{sBlk}, s{sBlk}, 1
        s_sub_u32 s{sTmp}, s{sBlk}, 10
        s_cselect_b32 s{sBlk}, s{sBlk}, s{sTmp}
        s_mul_i32 s{sPb}, s{sBlk}, 10240
        s_lshl_b32 s{sBlk}, s{sBlk}, 7
        """)
        P(f"""
        v_and_b32 v20, 6, v17
        v_xor_b32 v20, v16, v20
        v_lshlrev_b32 v21, 7, v17
        v_lshl_add_u32 v21, v20, 4, v21
        s_lshl_b32 s{sTmp}, s{sFlip}, 6
        v_xor_b32 v{vXa}, s{sTmp}, v21
        v_xor_b32 v{vXb}, 64, v{vXa}
        v_xor_b32 v20, v17, v16
        v_lshlrev_b32 v21, 8, v16
        v_lshl_add_u32 v{vKd}, v20, 4, v21
        v_lshlrev_b32 v20, 1, v16
        v_xor_b32 v20, v17, v20
        v_lshl_add_u32 v{vVd}, v20, 4, v21
        v_lshrrev_b32 v22, 2, v17
        v_and_b32 v23, 3, v17
        v_and_b32 v24, 1, v22
        v_lshrrev_b32 v25, 1, v22
        v_mul_u32_u24 v24, 2176, v24
        v_lshl_add_u32 v24, v25, 10, v24
        v_mul_u32_u24 v25, 272, v23
        v_add_u32 v24, v24, v25
        v_lshl_add_u32 v24, v16, 6, v24
        v_add_u32 v{vKr}, s{sT}, v24
        v_and_b32 v24, 1, v16
        v_lshrrev_b32 v25, 1, v16
        v_mul_u32_u24 v24, 2176, v24
        v_lshl_add_u32 v24, v25, 10, v24
        v_mul_u32_u24 v25, 288, v22
        v_add_u32 v24, v24, v25
        v_lshl_add_u32 v24, v23, 3, v24
        v_add_u32 v{vVr}, s{sT}, v24
        v_lshlrev_b32 v{vL16}, 4, v0
        v_lshlrev_b32 v{vL8}, 3, v0
        v_mov_b32 v20, 0x3f803f80
        """)
        for i in range(4): P(f"v_accvgpr_write_b32 a{aONE+i}, v20")

    def xgroup(self, g, L):
        for e in range(5):
            if e % 4 == 0: L.append(I(f"s_add_u32 m0, s{sXm}, {g*20480 + e*1024}"))
            L.append(I(f"s_add_u32 s{sTmp3}, s{sXp}, {e*10240 - (e%4)*1024}"))
            L.append(I(f"buffer_load_dwordx4 v{vXd}, {srd(sX)}, s{sTmp3} offen offset:{(e%4)*1024} {self.o.x_mod} lds", tag=f"x{g}"))
        if g < 4:
            L.append(I(f"s_add_u32 s{sXp}, s{sXp}, 256"))
            L.append(I(f"s_sub_u32 s{sTmp3}, s{sXp}, 1280"))
            L.append(I(f"s_cselect_b32 s{sXp}, s{sXp}, s{sTmp3}"))
    def wloads(self, i, L):
        base = STG + 32 * (i % 3)
        for j in range(8):
            va = (vWe0, vWe1)[j >> 2] if i % 2 == 0 else (vWo0, vWo1)[j >> 2]
            L.append(I(f"buffer_load_dwordx4 {vr('v', base + 4*j, 4)}, v{va}, {srd(sW + 4*(j&3))}, s{sP} offen {self.o.w_mod}", tag=f"w{i}"))
        if i % 2 == 1 and i < 19:
            L.append(I(f"s_add_u32 s{sP}, s{sP}, 0x80000"))
            L.append(I(f"s_sub_u32 s{sTmp}, s{sP}, 0x500000"))
            L.append(I(f"s_cselect_b32 s{sP}, s{sP}, s{sTmp}"))
    def perms(self, i, p):
        base = STG + 32 * (i % 3); L = []
        for hb in range(2):
            for q in range(4):
                L.append(I(f"v_perm_b32 v{WF + 8*(p&1) + 4*hb + q}, v{base + 4*(2*q+1) + p}, v{base + 4*(2*q) + p}, s{(sSelLo, sSelHi)[hb]}"))
        return L
    def xreads(self, i):
        va = vXa if i % 2 == 0 else vXb
        return [I(f"ds_read_b128 {vr('a', aXF + 20*(i%2) + 4*mt, 4)}, v{va} offset:{((i>>1)%5)*10240 + mt*2048}", tag=f"xr{i}") for mt in range(5)]
    def kv_dma(self, u):
        isv = u >= 5; kt = u - 5 if isv else u; slot = u % 3
        s = srd(sV if isv else sK); va = vVd if isv else vKd; m = self.o.kv_mod
        L = []
        if u >= 3: L.append(I(f"WAITLG kvr{u-3}"))
        L += [I(f"s_add_u32 m0, s{sT}, {slot*USZ}"), I(f"s_mov_b32 s{sTmp2}, {kt*4096}")]
        for e in range(4):
            if e == 2: L.append(I(f"s_add_u32 m0, s{sT}, {slot*USZ + 128}"))
            L.append(I(f"buffer_load_dwordx4 v{va}, {s}, s{sTmp2} offen offset:{1024*e} {m} lds", tag=f"kv{u}"))
        return L
    def kv_reads(self, units):
        L = [I("WAITVM " + " ".join(f"kv{u}" for u in units), mem_w=["T"])]
        ku = [u for u in units if u < 5]; vu = [u for u in units if u >= 5]
        for s in range(4):
            if not ku: break
            va = vKr
            if s: L.append(I(f"v_xor_b32 v{vTa}, {16*s}, v{vKr}")); va = vTa
            for u in ku:
                L.append(I(f"ds_read_b128 {vr('a', aK + 16*u + 4*s, 4)}, v{va} offset:{(u%3)*USZ}", tag=f"kvr{u}", mem_r=["T"]))
        for tl in range(4):
            if not vu: break
            va = vVr
            if tl: L.append(I(f"v_xor_b32 v{vTb}, {32*tl}, v{vVr}")); va = vTb
            for u in vu:
                kt = u - 5
                for th in range(2):
                    T = tl + 4*th
                    d = (aV0, aV1)[kt >> 1] + 4*T + 2*(kt & 1) if kt < 4 else aV2 + 2*T
                    L.append(I(f"ds_read_b64_tr_b16 {vr('a', d, 2)}, v{va} offset:{(u%3)*USZ + 128*th}", tag=f"kvr{u}", mem_r=["T"]))
        return L
    def wo_dma(self, n):
        r, q = divmod(n, 4); L = []
        L.append(I(f"s_add_u32 m0, s{sW4k}, {(n%5)*16384}"))
        L.append(I(f"s_add_u32 s{sTmp2}, s{sBlk}, {q*163840}"))
        for e in range(4):
            L.append(I(f"buffer_load_dwordx4 v{1+e}, {srd(sWo)}, s{sTmp2} offen offset:{1024*e} {self.o.wo_mod} lds", tag=f"wo{n}"))
        if q == 3 and r < 9:
            L += [I(f"s_add_u32 s{sBlk}, s{sBlk}, 128"), I(f"s_sub_u32 s{sTmp}, s{sBlk}, 1280"), I(f"s_cselect_b32 s{sBlk}, s{sBlk}, s{sTmp}")]
        return L

    def qproj(self):
        P = self.P; o = self.o
        P("WAITVM x0\ns_barrier")
        P.add(self.xreads(0)); P.add(self.perms(0, 0))
        self.stamp()
        M = []
        for i in range(20):
            for p in range(4):
                for mt in range(5):
                    for hb in range(2):
                        t = 2*p + hb; c = reg(acc(t, mt), 4)
                        M.append(I(f"v_mfma_f32_16x16x32_bf16 {c}, {vr('v', WF + 8*(p&1) + 4*hb, 4)}, {vr('a', aXF + 20*(i%2) + 4*mt, 4)}, {c if i else 0}"))
        S = Slots(M)
        def seq(L, lo, hi, step=0.0):
            p = lo
            for k, ins in enumerate(L):
                p = S.put(max(p, int(lo + k*step)), ins, hi)
            return p
        for i in range(20):
            b = 40*i
            for p in range(4):
                ni, np_ = (i, p+1) if p < 3 else (i+1, 0)
                if ni >= 20: continue
                if np_ == 0: S.put(b + 29, I(f"WAITVM w{ni}"), b + 29)
                seq(self.perms(ni, np_), b + 10*p, b + 10*p + 3, 0.5)
            if i < 19: S.put(b + 39, I(f"WAITLG xr{i+1}"), b + 39)
        for i in range(19):
            b = 40*i; L = self.xreads(i+1); lo = b + 4
            if (i+1) % 4 == 0:
                S.put(lo, I(f"WAITVM x{(i+1)//4}"), lo); S.put(lo, I("s_barrier"), lo); lo += 1
            if i + 1 == 10: S.put(lo, I(f"v_add_u32 v{vXa}, 51200, v{vXa}"), lo)
            if i + 1 == 11: S.put(lo, I(f"v_add_u32 v{vXb}, 51200, v{vXb}"), lo)
            S.put(lo, L[0], lo)
            for k in range(1, 5): S.put(b + 4 + 5*k, L[k], b + 4 + 5*k)
        vm = []
        for i in range(3, 20):
            L = []; self.wloads(i, L)
            lo = 40*(i-3) + 30
            for k, ins in enumerate(L): vm.append((lo + 5 + 10*(min(k,7)//2) + 2*(min(k,7)&1), 0, ins, 40*(i-1) + 10))
        for g in range(5):
            if o.x_issue[g] >= 0:
                L = []; self.xgroup(g, L)
                for ins in L: vm.append((40*o.x_issue[g] + 4, 1, ins, None))
        for u in range(10):
            for ins in self.kv_dma(u): vm.append((40*o.kv_issue[u] + 4, 2, ins, None))
        vm.sort(key=lambda x: (x[0], x[1]))
        p = 0
        for lo, _, ins, hi in vm:
            p = S.put(max(p, lo), ins, None if hi is None else max(hi, p))
        for st in sorted(set(o.kv_read.values())):
            if st >= 20: continue
            seq(self.kv_reads([u for u in range(10) if o.kv_read[u] == st]), 40*st, 40*st + 38, 1)
        S.put(40*19 + 4, I("s_barrier"))
        P.add(S.emit())
        print("; qproj slot overflows:", S.over, file=sys.stderr)
        self.stamp()

    def attention(self):
        P = self.P; o = self.o; L = []
        A = lambda t, **kw: L.append(I(t, **kw))
        late = [u for u in range(10) if o.kv_read[u] >= 20]
        A("v_lshrrev_b32 v5, 3, v0"); A("v_and_b32 v6, 7, v0"); A("v_lshrrev_b32 v7, 4, v0"); A("v_lshlrev_b32 v7, 1, v7")
        A("v_xor_b32 v6, v6, v7"); A("v_mul_u32_u24 v5, 1280, v5"); A("v_lshl_add_u32 v1, v6, 4, v5")
        A(f"s_mul_i32 s{sTmp}, s{sWave}, 40960"); A(f"v_add_u32 v1, s{sTmp}, v1")
        for e in range(1, 4): A(f"v_add_u32 v{1+e}, {e*9216}, v1")
        A(f"v_add_u32 v5, s{sT}, v{vL16}")
        A(f"s_mul_i32 s{sTmp}, s{sWave}, 5120"); A(f"s_add_u32 s{sTmp}, s{sTmp}, 81920"); A(f"v_add_u32 v6, s{sTmp}, v{vL16}")
        for n in range(5): L += self.wo_dma(n)
        R = lambda mt, k: (ACC + 32*mt + k) if mt < 4 else (112 + k if k < 16 else k)
        Q = lambda mt: STG + 16*mt
        for mt in range(5):
            if mt == 4:
                for k in range(32): A(f"v_accvgpr_read_b32 v{R(4,k)}, a{aACC4+k}")
            for s in range(4):
                for e in range(4):
                    A(f"v_cvt_pk_bf16_f32 v{Q(mt)+4*s+e}, v{R(mt, 8*e+s)}, v{R(mt, 8*e+4+s)}")
            if o.dump == "q": continue
            for s in range(4):
                for kt in range(5):
                    c = vr('v', R(mt, 4*kt), 4)
                    A(f"v_mfma_f32_16x16x32_bf16 {c}, {vr('a', aK+16*kt+4*s, 4)}, {vr('v', Q(mt)+4*s, 4)}, {c if s else 0}")
            m0, m1, m2 = R(mt, 20), R(mt, 21), R(mt, 22)
            A(f"v_max3_f32 v{m0}, v{R(mt,0)}, v{R(mt,1)}, v{R(mt,2)}")
            A(f"v_max3_f32 v{m1}, v{R(mt,3)}, v{R(mt,4)}, v{R(mt,5)}")
            for k in range(6, 20, 2):
                d = (m0, m1)[(k//2) & 1]
                A(f"v_max3_f32 v{d}, v{d}, v{R(mt,k)}, v{R(mt,k+1)}")
            A(f"v_max_f32 v{m0}, v{m0}, v{m1}")
            for sw in ("32", "16"):
                A(f"v_mov_b32 v{m1}, v{m0}"); A(f"v_permlane{sw}_swap_b32 v{m0}, v{m1}"); A(f"v_max_f32 v{m0}, v{m0}, v{m1}")
            A(f"v_mul_f32 v{m0}, s{sC}, v{m0}")
            for k in range(20):
                A(f"v_fma_f32 v{R(mt,k)}, v{R(mt,k)}, s{sC}, -v{m0}")
                A(f"v_exp_f32 v{R(mt,k)}, v{R(mt,k)}")
            for k in range(10): A(f"v_cvt_pk_bf16_f32 v{Q(mt)+k}, v{R(mt,2*k)}, v{R(mt,2*k+1)}")
        if late: L += self.kv_reads(late)
        for mt in range(5):
            if o.dump == "q": break
            sm = vr('v', Q(mt)+12, 4)
            for u in range(3):
                n = 4 if u < 2 else 2; op = "v_mfma_f32_16x16x32_bf16" if u < 2 else "v_mfma_f32_16x16x16_bf16"
                pb = vr('v', Q(mt)+4*u, n)
                A(f"{op} {sm}, {vr('a', aONE, n)}, {pb}, {sm if u else 0}")
                for T in range(8):
                    c = vr('v', R(mt, 4*T), 4)
                    A(f"{op} {c}, {vr('a', (aV0, aV1, aV2)[u] + n*T, n)}, {pb}, {c if u else 0}")
            A(f"v_rcp_f32 v{Q(mt)+12}, v{Q(mt)+12}")
            for s in range(4):
                for k in range(8): A(f"v_mul_f32 v{R(mt,8*s+k)}, v{R(mt,8*s+k)}, v{Q(mt)+12}")
                for k in range(4): A(f"v_cvt_pk_bf16_f32 v{R(mt,8*s+k)}, v{R(mt,8*s+2*k)}, v{R(mt,8*s+2*k+1)}")
                f = 4*mt + s
                A(f"ds_write_b128 v{5 if f < 15 else 6}, {vr('v', R(mt,8*s), 4)} offset:{1024*(f if f < 15 else f-15)}", mem_w=["T"] if f == 0 else [], mem_r=["T"])
        P.add(list_schedule(L, history=P.code[-10:], verbose=True))
        self.stamp()

    def outproj(self):
        P = self.P; o = self.o
        OA = 128; WR = 148; PK = 164
        F = lambda q, mt, s: (lambda n: ('a', 4*n) if n < 64 else ('v', 192 + 4*(n-64)))(q*20 + mt*4 + s)
        P(f"""
        v_lshrrev_b32 v16, 2, v0
        v_lshrrev_b32 v17, 3, v0
        v_and_b32 v17, 3, v17
        v_xor_b32 v17, s{sWave}, v17
        v_and_b32 v18, 3, v0
        v_lshlrev_b32 v16, 7, v16
        v_lshl_add_u32 v16, v17, 5, v16
        v_lshl_add_u32 v7, v18, 3, v16
        v_add_u32 v8, 0x10000, v7
        v_add_u32 v9, {XREG}, v{vL16}
        v_add_u32 v10, 81920, v{vL16}
        WAITVM wo0
        s_waitcnt lgkmcnt(0)
        s_barrier
        """)
        self.stamp()
        def oread(q, mt, s):
            f = 4*mt + s
            a = f"v9 offset:{TSTR*q + 1024*f}" if f < 15 else f"v10 offset:{5120*q + 1024*(f-15)}"
            return I(f"ds_read_b128 {reg(F(q,mt,s),4)}, {a}")
        def wread(k):
            n, s = divmod(k, 4); pos = n % 5
            return [I(f"ds_read_b64_tr_b16 {vr('v', WR + 4*(k%4) + 2*hh, 2)}, v{8 if pos == 4 else 7} offset:{(pos%4)*16384 + s*4096 + hh*2048}") for hh in range(2)]
        def flush(r):
            cv = [[I(f"v_cvt_pk_bf16_f32 v{PK+2*mt+h}, v{OA+4*mt+2*h}, v{OA+4*mt+2*h+1}") for h in range(2)] for mt in range(5)]
            st = [I(f"buffer_store_dwordx4 {vr('v', PK, 4)}, v{vL16}, {srd(sWs)}, s{sPb} offen {o.part_mod}", tag=f"ps{r}"),
                  I(f"buffer_store_dwordx4 {vr('v', PK+4, 4)}, v{vL16}, {srd(sWs)}, s{sPb} offen offset:1024 {o.part_mod}", tag=f"ps{r}"),
                  I(f"buffer_store_dwordx2 {vr('v', PK+8, 2)}, v{vL8}, {srd(sWs)}, s{sPb} offen offset:2048 {o.part_mod}", tag=f"ps{r}"),
                  I(f"s_add_u32 s{sPb}, s{sPb}, 10240"), I(f"s_sub_u32 s{sTmp3}, s{sPb}, 102400"), I(f"s_cselect_b32 s{sPb}, s{sPb}, s{sTmp3}")]
            return cv, st
        P.add(wread(0)); P.add([oread(0, mt, 0) for mt in range(5)]); P.add(wread(1)); P.add([oread(0, mt, 1) for mt in range(5)])
        M = []
        for k in range(160):
            q, s = (k // 4) % 4, k % 4
            for mt in range(5):
                c = vr('v', OA + 4*mt, 4)
                M.append(I(f"v_mfma_f32_16x16x32_bf16 {c}, {vr('v', WR + 4*(k%4), 4)}, {reg(F(q,mt,s),4)}, {c if k % 16 else 0}"))
        S = Slots(M)
        stores = {}
        for r in range(9):
            cv, st = flush(r)
            for mt in range(5):
                for ins in cv[mt]: S.put(80*r + 79 + mt, ins, 80*r + 79 + mt)
            stores[r] = st
        vm = []
        for k in range(158):
            b = 5*k; lo = b
            if (k + 2) % 4 == 0:
                n = k // 4
                p = S.put(b, I(f"WAITVM wo{n+1}"), b); p = S.put(b, I("s_barrier"), b); lo = b + 1
                if n >= 1 and n + 4 < 40:
                    for j, ins in enumerate(self.wo_dma(n + 4)): vm.append((b + 1 + max(0, 4*(min(j,5)-2)), ins))
            L = wread(k + 2)
            if k + 2 < 16: L += [oread((k+2)//4, mt, (k+2)%4) for mt in range(5)]
            p = lo
            for ins in L: p = S.put(p, ins, b + 4)
        for r in range(9):
            for j, ins in enumerate(stores[r]): vm.append((80*r + 85 + min(j, 2), ins))
        vm.sort(key=lambda x: x[0])
        p = 0
        for lo, ins in vm: p = S.put(max(p, lo), ins)
        P.add(S.emit())
        print("; outproj slot overflows:", S.over, file=sys.stderr)
        cv, st = flush(9)
        for mt in range(5): P.add(cv[mt])
        P.add(st[:3])
        self.stamp()

    def dump_regs(self, regs):
        P = self.P
        P(f"s_waitcnt vmcnt(0) lgkmcnt(0)\ns_lshl_b32 s{sTmp}, s2, 2\ns_add_u32 s{sTmp}, s{sTmp}, s{sWave}\ns_mul_i32 s{sTmp}, s{sTmp}, {len(regs)*256}\nv_lshlrev_b32 v1, 2, v0")
        for r in regs:
            P(f"buffer_store_dword {r}, v1, {srd(sMisc)}, s{sTmp} offen\ns_add_u32 s{sTmp}, s{sTmp}, 256\ns_waitcnt vmcnt(0)")

    def finish(self):
        P = self.P
        if self.o.stamps:
            P("s_waitcnt vmcnt(0)"); self.stamp()
            P("s_memrealtime s[96:97]\ns_waitcnt lgkmcnt(0)")
            P(f"s_lshl_b32 s{sTmp}, s2, 2\ns_add_u32 s{sTmp}, s{sTmp}, s{sWave}\ns_lshl_b32 s{sTmp}, s{sTmp}, 7\nv_mov_b32 v1, 0\ns_mov_b64 exec, 1")
            src = [92, 96, 94] + [STAMP0 + 2*i for i in range(self.nst)]
            for k, s in enumerate(src):
                P(f"v_mov_b32 v2, s{s}\nbuffer_store_dword v2, v1, {srd(sMisc)}, s{sTmp} offen offset:{4*k}")
        if self.o.probe is not None:
            P("s_waitcnt vmcnt(0)"); self.stamp()
            P("s_waitcnt lgkmcnt(0)\ns_sub_u32 s94, s94, s92\ns_mul_i32 s94, s94, 4\ns_add_u32 s94, s94, 10000")
            P("L_spin:\ns_memrealtime s[96:97]\ns_waitcnt lgkmcnt(0)\ns_sub_u32 s96, s96, s92\ns_cmp_lt_u32 s96, s94\ns_cbranch_scc1 L_spin")
        P("L_end:\ns_endpgm")

    def build(self):
        o = self.o
        self.prologue(); self.qproj(); self.attention()
        if o.dump == "q": self.dump_regs([f"v{STG+k}" for k in range(80)])
        elif o.dump == "o":
            R = lambda mt, k: (ACC + 32*mt + k) if mt < 4 else (112 + k if k < 16 else k)
            self.dump_regs([f"v{R(mt, 8*s+k)}" for mt in range(5) for s in range(4) for k in range(4)])
        else: self.outproj()
        self.finish()
        wl = []; nl = []
        code, _, _ = insert_waits(self.P.code, log=wl)
        code = insert_nops(code, log=nl)
        print(f"; auto waits {len(wl)}, auto nops {len(nl)} ({sum(n for n,_ in nl)} states)", file=sys.stderr)
        self.wl, self.nl = wl, nl
        Q = Prog(); Q.code = code
        return Q.text()

def reduce_kernel():
    P = Prog()
    P("s_cmp_ge_u32 s2, 320\ns_cbranch_scc1 L_rend")
    P("s_load_dwordx2 s[4:5], s[0:1], 80\ns_load_dwordx2 s[6:7], s[0:1], 96")
    P("v_lshrrev_b32 v1, 6, v0\nv_and_b32 v0, 63, v0\nv_readfirstlane_b32 s3, v1")
    P("""
    s_mul_i32 s16, s2, 6554
    s_lshr_b32 s16, s16, 16
    s_mul_i32 s17, s16, 10
    s_sub_u32 s17, s2, s17
    s_lshl_b32 s17, s17, 2
    s_add_u32 s17, s17, s3
    s_mul_i32 s18, s16, 819200
    s_mul_i32 s19, s17, 2560
    s_add_u32 s18, s18, s19
    v_lshlrev_b32 v2, 4, v0
    v_lshlrev_b32 v3, 3, v0
    s_waitcnt lgkmcnt(0)
    s_mov_b32 s8, s6
    s_mov_b32 s9, s7
    s_mov_b32 s10, 26214400
    s_mov_b32 s11, 0x20000
    s_mov_b32 s12, s4
    s_mov_b32 s13, s5
    s_mov_b32 s14, 3276800
    s_mov_b32 s15, 0x20000
    """)
    for s in range(8):
        b = 32 + 12*s
        P(f"buffer_load_dwordx4 v[{b}:{b+3}], v2, s[8:11], s18 offen")
        P(f"buffer_load_dwordx4 v[{b+4}:{b+7}], v2, s[8:11], s18 offen offset:1024")
        P(f"buffer_load_dwordx2 v[{b+8}:{b+9}], v3, s[8:11], s18 offen offset:2048")
        P("s_add_u32 s18, s18, 102400")
    P("""
    s_and_b32 s19, s16, 15
    s_lshr_b32 s20, s16, 4
    s_mul_i32 s19, s19, 204800
    s_mul_i32 s20, s20, 1280
    s_add_u32 s19, s19, s20
    s_lshl_b32 s20, s17, 5
    s_add_u32 s19, s19, s20
    v_and_b32 v4, 15, v0
    v_lshrrev_b32 v5, 4, v0
    v_mul_u32_u24 v4, 2560, v4
    v_lshl_add_u32 v4, v5, 3, v4
    """)
    for s in range(8):
        b = 32 + 12*s
        for k in range(10):
            if s == 0:
                P(f"v_lshlrev_b32 v{8+2*k}, 16, v{b+k}\nv_and_b32 v{9+2*k}, 0xffff0000, v{b+k}")
            else:
                P(f"v_lshlrev_b32 v6, 16, v{b+k}\nv_and_b32 v7, 0xffff0000, v{b+k}\nv_add_f32 v{8+2*k}, v{8+2*k}, v6\nv_add_f32 v{9+2*k}, v{9+2*k}, v7")
    for mt in range(5):
        P(f"v_cvt_pk_bf16_f32 v{32+2*mt}, v{8+4*mt}, v{9+4*mt}\nv_cvt_pk_bf16_f32 v{33+2*mt}, v{10+4*mt}, v{11+4*mt}")
        P(f"buffer_store_dwordx2 v[{32+2*mt}:{33+2*mt}], v4, s[12:15], s19 offen\ns_add_u32 s19, s19, 40960")
    P("L_rend:\ns_endpgm")
    code, _, _ = insert_waits(P.code); code = insert_nops(code)
    Q = Prog(); Q.code = code
    return Q.text()

def desc(name, vgpr, accum):
    return f""".amdhsa_kernel {name}
  .amdhsa_next_free_vgpr {vgpr}
  .amdhsa_next_free_sgpr 102
  .amdhsa_accum_offset {accum}
  .amdhsa_group_segment_fixed_size 0
  .amdhsa_kernarg_size 104
  .amdhsa_user_sgpr_count 2
  .amdhsa_user_sgpr_kernarg_segment_ptr 1
  .amdhsa_system_sgpr_workgroup_id_x 1
  .amdhsa_float_denorm_mode_32 3
.end_amdhsa_kernel
"""
def full(o):
    g = Gen(o); body = g.build()
    main = NAME + "_kernel"
    t = f"; @launch kernel={main} grid=(256,1,1) block=(256,1,1) lds={LDS}\n; @launch kernel=reduce_kernel grid=(320,1,1) block=(256,1,1) lds=0\n"
    t += '.amdgcn_target "amdgcn-amd-amdhsa--gfx950"\n.text\n'
    t += f".globl {main}\n.p2align 8\n.type {main},@function\n{main}:\n" + body
    t += ".globl reduce_kernel\n.p2align 8\n.type reduce_kernel,@function\nreduce_kernel:\n" + reduce_kernel()
    t += '.section .rodata,"a"\n.p2align 6\n' + desc(main, 512, 256) + ".p2align 6\n" + desc("reduce_kernel", 128, 128)
    return t, g

if __name__ == "__main__":
    o = Opt()
    out = sys.argv[1]
    for a in sys.argv[2:]:
        k, v = a.split("=", 1); setattr(o, k, eval(v))
    t, g = full(o)
    open(out, "w").write(t)
```

```python
import sys, math
from asmlib import *

NAME = "concat_heads__gqa_block_cached__gqa_block_cached__near_ridge"
LDS = 163840
sX, sW, sK, sV, sWo, sWs, sOut, sMisc = 4, 8, 24, 28, 32, 36, 40, 44
sWave = 3
sB, sJ, sBr, sP, sSelLo, sSelHi, sT, sTmp, sXp, sXm, sC, sBlk, sW4k, sTmp2, sFlip, sPb, sTmp3 = range(74, 91)
STAMP0 = 48
def srd(b): return f"s[{b}:{b+3}]"
vWe0, vWe1, vWo0, vWo1, vXa, vXb, vXd, vKd, vVd, vKr, vVr, vTa, vTb, vL16, vL8 = range(1, 16)
WF = 16; STG = 32; ACC = 128
aACC4 = 0; aXF = 32; aK = 72; aV0 = 152; aV1 = 184; aV2 = 216; aONE = 232
XREG = 102400; TSTR = 15360; USZ = 4224

class Opt:
    stamps = False
    kv_mod = "nt"; w_mod = ""; x_mod = ""; wo_mod = ""; part_mod = "sc1"
    kv_issue = {0: 2, 1: 2, 2: 2, 3: 7, 4: 7, 5: 7, 6: 12, 7: 12, 8: 12, 9: 17}
    kv_read = {0: 6, 1: 6, 2: 6, 3: 11, 4: 11, 5: 11, 6: 16, 7: 16, 8: 16, 9: 20}
    x_issue = {0: -1, 1: -1, 2: -1, 3: 1, 4: 5}
    dump = None
    probe = None
    latprobe = None
    empty = 0

def acc(t, mt): return ("v", ACC + 32*mt + 4*t) if mt < 4 else ("a", aACC4 + 4*t)
def reg(kr, n): return vr(kr[0], kr[1], n)

class Gen:
    def __init__(self, o):
        self.o = o; self.P = Prog(); self.nst = 0
    def stamp(self, L=None):
        if self.o.probe is not None:
            if self.nst == self.o.probe: self.P("s_memrealtime s[94:95]")
            self.nst += 1
        if not self.o.stamps: return
        i = self.nst; self.nst += 1
        ins = I(f"s_memtime s[{STAMP0+2*i}:{STAMP0+2*i+1}]")
        (self.P.code if L is None else L).append(ins)

    def prologue(self):
        P = self.P; o = self.o
        P("s_cmp_ge_u32 s2, 256\ns_cbranch_scc1 L_end")
        if o.stamps: P("s_memrealtime s[92:93]\ns_memtime s[94:95]")
        if o.probe is not None: P("s_memrealtime s[92:93]\ns_memrealtime s[94:95]")
        P("s_load_dwordx16 s[48:63], s[0:1], 0\ns_load_dwordx8 s[64:71], s[0:1], 64\ns_load_dwordx2 s[72:73], s[0:1], 96")
        P(f"v_lshrrev_b32 v1, 6, v0\nv_and_b32 v0, 63, v0\nv_readfirstlane_b32 s{sWave}, v1")
        P(f"""
        s_lshr_b32 s{sB}, s2, 4
        s_bfe_u32 s{sBr}, s2, 0x10002
        s_and_b32 s{sJ}, s2, 3
        s_lshl_b32 s{sJ}, s{sJ}, 1
        s_bfe_u32 s{sTmp}, s2, 0x10003
        s_add_u32 s{sJ}, s{sJ}, s{sTmp}
        s_mul_i32 s{sTmp}, s{sTmp}, 5
        s_cmp_ge_u32 s{sB}, 10
        s_cselect_b32 s{sFlip}, 1, 0
        s_cselect_b32 s{sTmp2}, 10, 0
        s_sub_u32 s{sPb}, s{sB}, s{sTmp2}
        s_add_u32 s{sP}, s{sPb}, s{sTmp}
        s_sub_u32 s{sTmp2}, s{sP}, 10
        s_cselect_b32 s{sP}, s{sP}, s{sTmp2}
        s_and_b32 s{sTmp}, s{sWave}, 1
        s_add_u32 s{sXp}, s{sP}, s{sTmp}
        s_sub_u32 s{sTmp2}, s{sXp}, 10
        s_cselect_b32 s{sXp}, s{sXp}, s{sTmp2}
        s_lshl_b32 s{sXp}, s{sXp}, 7
        s_lshl_b32 s{sP}, s{sP}, 19
        s_mul_i32 s{sXm}, s{sTmp}, 10240
        s_lshr_b32 s{sTmp}, s{sWave}, 1
        s_mul_i32 s{sTmp2}, s{sTmp}, 5120
        s_add_u32 s{sXm}, s{sXm}, s{sTmp2}
        s_mul_i32 s{sTmp3}, s{sTmp}, 51200
        s_mul_i32 s{sT}, s{sWave}, {TSTR}
        s_add_u32 s{sT}, s{sT}, {XREG}
        s_lshl_b32 s{sW4k}, s{sWave}, 12
        """)
        P(f"""
        v_lshrrev_b32 v16, 4, v0
        v_and_b32 v17, 15, v0
        v_lshrrev_b32 v18, 3, v0
        v_and_b32 v19, 7, v0
        v_and_b32 v20, 6, v18
        v_xor_b32 v20, v19, v20
        v_mul_u32_u24 v21, 1280, v18
        v_lshl_add_u32 v{vXd}, v20, 4, v21
        v_add_u32 v{vXd}, s{sTmp3}, v{vXd}
        v_lshlrev_b32 v21, 16, v16
        v_lshl_add_u32 v21, v17, 4, v21
        s_lshl_b32 s{sTmp}, s{sFlip}, 18
        s_xor_b32 s{sTmp2}, s{sTmp}, 0x40000
        v_add_u32 v{vWe0}, s{sTmp}, v21
        v_add_u32 v{vWo0}, s{sTmp2}, v21
        v_add_u32 v{vWe1}, 0x8000, v{vWe0}
        v_add_u32 v{vWo1}, 0x8000, v{vWo0}
        """)
        P("s_waitcnt lgkmcnt(0)")
        if o.latprobe is not None:
            p, mode = o.latprobe
            P(f"s_mov_b32 s44, s{48+2*p}\ns_mov_b32 s45, s{49+2*p}\ns_mov_b32 s46, 0x100000\ns_mov_b32 s47, 0x20000")
            if mode == "lat":
                P(f"s_mov_b32 s96, 0\ns_cmp_lg_u32 s2, 0\ns_cbranch_scc1 L_nolat")
                P(f"v_mov_b32 v30, 0\ns_lshl_b32 s97, s{sWave}, 17\nbuffer_load_dword v31, v30, s[44:47], s97 offen\ns_waitcnt vmcnt(0)\ns_memrealtime s[98:99]\ns_waitcnt lgkmcnt(0)")
                for k in range(16):
                    P(f"s_add_u32 s97, s97, 4352\nbuffer_load_dword v31, v30, s[44:47], s97 offen\ns_waitcnt vmcnt(0)")
                P("s_memrealtime s[100:101]\ns_waitcnt lgkmcnt(0)\ns_sub_u32 s96, s100, s98\nL_nolat:")
                P("L_w0:\ns_memrealtime s[98:99]\ns_waitcnt lgkmcnt(0)\ns_sub_u32 s98, s98, s92\ns_cmp_lt_u32 s98, 2000\ns_cbranch_scc1 L_w0")
                P("s_add_u32 s94, s92, s96")
        P(f"s_cmp_eq_u32 s{sBr}, 0")
        for i in range(5): P(f"s_cselect_b64 s[{48+2*i}:{49+2*i}], s[{48+2*i}:{49+2*i}], s[{58+2*i}:{59+2*i}]")
        def mk(d, p, off, size):
            P(f"s_add_u32 s{d}, s{p}, {off}\ns_addc_u32 s{d+1}, s{p+1}, 0\ns_mov_b32 s{d+2}, {size}\ns_mov_b32 s{d+3}, 0x20000")
        P(f"s_mul_i32 s{sTmp}, s{sB}, 102400"); mk(sX, 48, f"s{sTmp}", 102400)
        P(f"s_lshl_b32 s{sTmp2}, s{sJ}, 2\ns_add_u32 s{sTmp2}, s{sTmp2}, s{sWave}\ns_lshl_b32 s{sTmp}, s{sTmp2}, 8")
        for j in range(4):
            mk(sW + 4*j, 54, f"s{sTmp}", 640*8192 - 3*8192 - 31*256 )
            if j < 3: P(f"s_add_u32 s{sTmp}, s{sTmp}, 8192")
        self.xgroup(0, P.code)
        self.wloads(0, P.code)
        self.wloads(1, P.code)
        for g in range(1, 5):
            if o.x_issue[g] < 0: self.xgroup(g, P.code)
        self.wloads(2, P.code)
        P(f"s_lshl_b32 s{sTmp}, s{sB}, 5\ns_add_u32 s{sTmp}, s{sTmp}, s{sTmp2}\ns_mul_i32 s{sTmp}, s{sTmp}, 20480")
        mk(sK, 50, f"s{sTmp}", 20480); mk(sV, 52, f"s{sTmp}", 20480)
        P(f"s_mul_i32 s{sTmp}, s{sJ}, 655360"); mk(sWo, 56, f"s{sTmp}", 655360)
        P(f"""
        s_lshl_b32 s{sTmp}, s{sBr}, 4
        s_add_u32 s{sTmp}, s{sTmp}, s{sB}
        s_lshl_b32 s{sTmp}, s{sTmp}, 3
        s_add_u32 s{sTmp}, s{sTmp}, s{sJ}
        s_mul_i32 s{sTmp}, s{sTmp}, 102400
        s_mul_i32 s{sTmp2}, s{sWave}, 2560
        s_add_u32 s{sTmp}, s{sTmp}, s{sTmp2}
        """)
        mk(sWs, 72, f"s{sTmp}", 102400 - 3*2560)
        if o.stamps or o.dump:
            mk(sMisc, 72, 0x8000000, 0x8000000)
        P(f"s_mov_b32 s{sSelLo}, 0x05040100\ns_mov_b32 s{sSelHi}, 0x07060302")
        c = math.log2(math.e) / math.sqrt(128.0)
        import struct
        P(f"s_mov_b32 s{sC}, {hex(struct.unpack('<I', struct.pack('<f', c))[0])}")
        P(f"""
        s_add_u32 s{sBlk}, s{sJ}, s{sPb}
        s_add_u32 s{sBlk}, s{sBlk}, 1
        s_sub_u32 s{sTmp}, s{sBlk}, 10
        s_cselect_b32 s{sBlk}, s{sBlk}, s{sTmp}
        s_mul_i32 s{sPb}, s{sBlk}, 10240
        s_lshl_b32 s{sBlk}, s{sBlk}, 7
        """)
        P(f"""
        v_and_b32 v20, 6, v17
        v_xor_b32 v20, v16, v20
        v_lshlrev_b32 v21, 7, v17
        v_lshl_add_u32 v21, v20, 4, v21
        s_lshl_b32 s{sTmp}, s{sFlip}, 6
        v_xor_b32 v{vXa}, s{sTmp}, v21
        v_xor_b32 v{vXb}, 64, v{vXa}
        v_xor_b32 v20, v17, v16
        v_lshlrev_b32 v21, 8, v16
        v_lshl_add_u32 v{vKd}, v20, 4, v21
        v_lshlrev_b32 v20, 1, v16
        v_xor_b32 v20, v17, v20
        v_lshl_add_u32 v{vVd}, v20, 4, v21
        v_lshrrev_b32 v22, 2, v17
        v_and_b32 v23, 3, v17
        v_and_b32 v24, 1, v22
        v_lshrrev_b32 v25, 1, v22
        v_mul_u32_u24 v24, 2176, v24
        v_lshl_add_u32 v24, v25, 10, v24
        v_mul_u32_u24 v25, 272, v23
        v_add_u32 v24, v24, v25
        v_lshl_add_u32 v24, v16, 6, v24
        v_add_u32 v{vKr}, s{sT}, v24
        v_and_b32 v24, 1, v16
        v_lshrrev_b32 v25, 1, v16
        v_mul_u32_u24 v24, 2176, v24
        v_lshl_add_u32 v24, v25, 10, v24
        v_mul_u32_u24 v25, 288, v22
        v_add_u32 v24, v24, v25
        v_lshl_add_u32 v24, v23, 3, v24
        v_add_u32 v{vVr}, s{sT}, v24
        v_lshlrev_b32 v{vL16}, 4, v0
        v_lshlrev_b32 v{vL8}, 3, v0
        v_mov_b32 v20, 0x3f803f80
        """)
        for i in range(4): P(f"v_accvgpr_write_b32 a{aONE+i}, v20")

    def xgroup(self, g, L):
        for e in range(5):
            if e % 4 == 0: L.append(I(f"s_add_u32 m0, s{sXm}, {g*20480 + e*1024}"))
            L.append(I(f"s_add_u32 s{sTmp3}, s{sXp}, {e*10240 - (e%4)*1024}"))
            L.append(I(f"buffer_load_dwordx4 v{vXd}, {srd(sX)}, s{sTmp3} offen offset:{(e%4)*1024} {self.o.x_mod} lds", tag=f"x{g}"))
        if g < 4:
            L.append(I(f"s_add_u32 s{sXp}, s{sXp}, 256"))
            L.append(I(f"s_sub_u32 s{sTmp3}, s{sXp}, 1280"))
            L.append(I(f"s_cselect_b32 s{sXp}, s{sXp}, s{sTmp3}"))
    def wloads(self, i, L):
        base = STG + 32 * (i % 3)
        for j in range(8):
            va = (vWe0, vWe1)[j >> 2] if i % 2 == 0 else (vWo0, vWo1)[j >> 2]
            L.append(I(f"buffer_load_dwordx4 {vr('v', base + 4*j, 4)}, v{va}, {srd(sW + 4*(j&3))}, s{sP} offen {self.o.w_mod}", tag=f"w{i}"))
        if i % 2 == 1 and i < 19:
            L.append(I(f"s_add_u32 s{sP}, s{sP}, 0x80000"))
            L.append(I(f"s_sub_u32 s{sTmp}, s{sP}, 0x500000"))
            L.append(I(f"s_cselect_b32 s{sP}, s{sP}, s{sTmp}"))
    def perms(self, i, p):
        base = STG + 32 * (i % 3); L = []
        for hb in range(2):
            for q in range(4):
                L.append(I(f"v_perm_b32 v{WF + 8*(p&1) + 4*hb + q}, v{base + 4*(2*q+1) + p}, v{base + 4*(2*q) + p}, s{(sSelLo, sSelHi)[hb]}"))
        return L
    def xreads(self, i):
        va = vXa if i % 2 == 0 else vXb
        return [I(f"ds_read_b128 {vr('a', aXF + 20*(i%2) + 4*mt, 4)}, v{va} offset:{((i>>1)%5)*10240 + mt*2048}", tag=f"xr{i}") for mt in range(5)]
    def kv_dma(self, u):
        isv = u >= 5; kt = u - 5 if isv else u; slot = u % 3
        s = srd(sV if isv else sK); va = vVd if isv else vKd; m = self.o.kv_mod
        L = []
        if u >= 3: L.append(I(f"WAITLG kvr{u-3}"))
        L += [I(f"s_add_u32 m0, s{sT}, {slot*USZ}"), I(f"s_mov_b32 s{sTmp2}, {kt*4096}")]
        for e in range(4):
            if e == 2: L.append(I(f"s_add_u32 m0, s{sT}, {slot*USZ + 128}"))
            L.append(I(f"buffer_load_dwordx4 v{va}, {s}, s{sTmp2} offen offset:{1024*e} {m} lds", tag=f"kv{u}"))
        return L
    def kv_reads(self, units):
        L = [I("WAITVM " + " ".join(f"kv{u}" for u in units), mem_w=["T"])]
        ku = [u for u in units if u < 5]; vu = [u for u in units if u >= 5]
        for s in range(4):
            if not ku: break
            va = vKr
            if s: L.append(I(f"v_xor_b32 v{vTa}, {16*s}, v{vKr}")); va = vTa
            for u in ku:
                L.append(I(f"ds_read_b128 {vr('a', aK + 16*u + 4*s, 4)}, v{va} offset:{(u%3)*USZ}", tag=f"kvr{u}", mem_r=["T"]))
        for tl in range(4):
            if not vu: break
            va = vVr
            if tl: L.append(I(f"v_xor_b32 v{vTb}, {32*tl}, v{vVr}")); va = vTb
            for u in vu:
                kt = u - 5
                for th in range(2):
                    T = tl + 4*th
                    d = (aV0, aV1)[kt >> 1] + 4*T + 2*(kt & 1) if kt < 4 else aV2 + 2*T
                    L.append(I(f"ds_read_b64_tr_b16 {vr('a', d, 2)}, v{va} offset:{(u%3)*USZ + 128*th}", tag=f"kvr{u}", mem_r=["T"]))
        return L
    def wo_dma(self, n):
        r, q = divmod(n, 4); L = []
        L.append(I(f"s_add_u32 m0, s{sW4k}, {(n%5)*16384}"))
        L.append(I(f"s_add_u32 s{sTmp2}, s{sBlk}, {q*163840}"))
        for e in range(4):
            L.append(I(f"buffer_load_dwordx4 v{1+e}, {srd(sWo)}, s{sTmp2} offen offset:{1024*e} {self.o.wo_mod} lds", tag=f"wo{n}"))
        if q == 3 and r < 9:
            L += [I(f"s_add_u32 s{sBlk}, s{sBlk}, 128"), I(f"s_sub_u32 s{sTmp}, s{sBlk}, 1280"), I(f"s_cselect_b32 s{sBlk}, s{sBlk}, s{sTmp}")]
        return L

    def qproj(self):
        P = self.P; o = self.o
        P("WAITVM x0\ns_barrier")
        P.add(self.xreads(0)); P.add(self.perms(0, 0))
        self.stamp()
        M = []
        for i in range(20):
            for p in range(4):
                for mt in range(5):
                    for hb in range(2):
                        t = 2*p + hb; c = reg(acc(t, mt), 4)
                        M.append(I(f"v_mfma_f32_16x16x32_bf16 {c}, {vr('v', WF + 8*(p&1) + 4*hb, 4)}, {vr('a', aXF + 20*(i%2) + 4*mt, 4)}, {c if i else 0}"))
        S = Slots(M)
        def seq(L, lo, hi, step=0.0):
            p = lo
            for k, ins in enumerate(L):
                p = S.put(max(p, int(lo + k*step)), ins, hi)
            return p
        for i in range(20):
            b = 40*i
            for p in range(4):
                ni, np_ = (i, p+1) if p < 3 else (i+1, 0)
                if ni >= 20: continue
                if np_ == 0: S.put(b + 29, I(f"WAITVM w{ni}"), b + 29)
                seq(self.perms(ni, np_), b + 10*p, b + 10*p + 3, 0.5)
            if i < 19: S.put(b + 39, I(f"WAITLG xr{i+1}"), b + 39)
        for i in range(19):
            b = 40*i; L = self.xreads(i+1); lo = b + 4
            if (i+1) % 4 == 0:
                S.put(lo, I(f"WAITVM x{(i+1)//4}"), lo); S.put(lo, I("s_barrier"), lo); lo += 1
            if i + 1 == 10: S.put(lo, I(f"v_add_u32 v{vXa}, 51200, v{vXa}"), lo)
            if i + 1 == 11: S.put(lo, I(f"v_add_u32 v{vXb}, 51200, v{vXb}"), lo)
            S.put(lo, L[0], lo)
            for k in range(1, 5): S.put(b + 4 + 5*k, L[k], b + 4 + 5*k)
        vm = []
        for i in range(3, 20):
            L = []; self.wloads(i, L)
            lo = 40*(i-3) + 30
            for k, ins in enumerate(L): vm.append((lo + 5 + 10*(min(k,7)//2) + 2*(min(k,7)&1), 0, ins, 40*(i-1) + 10))
        for g in range(5):
            if o.x_issue[g] >= 0:
                L = []; self.xgroup(g, L)
                for ins in L: vm.append((40*o.x_issue[g] + 4, 1, ins, None))
        for u in range(10):
            for ins in self.kv_dma(u): vm.append((40*o.kv_issue[u] + 4, 2, ins, None))
        vm.sort(key=lambda x: (x[0], x[1]))
        p = 0
        for lo, _, ins, hi in vm:
            p = S.put(max(p, lo), ins, None if hi is None else max(hi, p))
        for st in sorted(set(o.kv_read.values())):
            if st >= 20: continue
            seq(self.kv_reads([u for u in range(10) if o.kv_read[u] == st]), 40*st, 40*st + 38, 1)
        S.put(40*19 + 4, I("s_barrier"))
        P.add(S.emit())
        print("; qproj slot overflows:", S.over, file=sys.stderr)
        self.stamp()

    def attention(self):
        P = self.P; o = self.o; L = []
        A = lambda t, **kw: L.append(I(t, **kw))
        late = [u for u in range(10) if o.kv_read[u] >= 20]
        A("v_lshrrev_b32 v5, 3, v0"); A("v_and_b32 v6, 7, v0"); A("v_lshrrev_b32 v7, 4, v0"); A("v_lshlrev_b32 v7, 1, v7")
        A("v_xor_b32 v6, v6, v7"); A("v_mul_u32_u24 v5, 1280, v5"); A("v_lshl_add_u32 v1, v6, 4, v5")
        A(f"s_mul_i32 s{sTmp}, s{sWave}, 40960"); A(f"v_add_u32 v1, s{sTmp}, v1")
        for e in range(1, 4): A(f"v_add_u32 v{1+e}, {e*9216}, v1")
        A(f"v_add_u32 v5, s{sT}, v{vL16}")
        A(f"s_mul_i32 s{sTmp}, s{sWave}, 5120"); A(f"s_add_u32 s{sTmp}, s{sTmp}, 81920"); A(f"v_add_u32 v6, s{sTmp}, v{vL16}")
        for n in range(5): L += self.wo_dma(n)
        R = lambda mt, k: (ACC + 32*mt + k) if mt < 4 else (112 + k if k < 16 else k)
        Q = lambda mt: STG + 16*mt
        for mt in range(5):
            if mt == 4:
                for k in range(32): A(f"v_accvgpr_read_b32 v{R(4,k)}, a{aACC4+k}")
            for s in range(4):
                for e in range(4):
                    A(f"v_cvt_pk_bf16_f32 v{Q(mt)+4*s+e}, v{R(mt, 8*e+s)}, v{R(mt, 8*e+4+s)}")
            if o.dump == "q": continue
            for s in range(4):
                for kt in range(5):
                    c = vr('v', R(mt, 4*kt), 4)
                    A(f"v_mfma_f32_16x16x32_bf16 {c}, {vr('a', aK+16*kt+4*s, 4)}, {vr('v', Q(mt)+4*s, 4)}, {c if s else 0}")
            m0, m1, m2 = R(mt, 20), R(mt, 21), R(mt, 22)
            A(f"v_max3_f32 v{m0}, v{R(mt,0)}, v{R(mt,1)}, v{R(mt,2)}")
            A(f"v_max3_f32 v{m1}, v{R(mt,3)}, v{R(mt,4)}, v{R(mt,5)}")
            for k in range(6, 20, 2):
                d = (m0, m1)[(k//2) & 1]
                A(f"v_max3_f32 v{d}, v{d}, v{R(mt,k)}, v{R(mt,k+1)}")
            A(f"v_max_f32 v{m0}, v{m0}, v{m1}")
            for sw in ("32", "16"):
                A(f"v_mov_b32 v{m1}, v{m0}"); A(f"v_permlane{sw}_swap_b32 v{m0}, v{m1}"); A(f"v_max_f32 v{m0}, v{m0}, v{m1}")
            A(f"v_mul_f32 v{m0}, s{sC}, v{m0}")
            for k in range(20):
                A(f"v_fma_f32 v{R(mt,k)}, v{R(mt,k)}, s{sC}, -v{m0}")
                A(f"v_exp_f32 v{R(mt,k)}, v{R(mt,k)}")
            for k in range(10): A(f"v_cvt_pk_bf16_f32 v{Q(mt)+k}, v{R(mt,2*k)}, v{R(mt,2*k+1)}")
        if late: L += self.kv_reads(late)
        for mt in range(5):
            if o.dump == "q": break
            sm = vr('v', Q(mt)+12, 4)
            for u in range(3):
                n = 4 if u < 2 else 2; op = "v_mfma_f32_16x16x32_bf16" if u < 2 else "v_mfma_f32_16x16x16_bf16"
                pb = vr('v', Q(mt)+4*u, n)
                A(f"{op} {sm}, {vr('a', aONE, n)}, {pb}, {sm if u else 0}")
                for T in range(8):
                    c = vr('v', R(mt, 4*T), 4)
                    A(f"{op} {c}, {vr('a', (aV0, aV1, aV2)[u] + n*T, n)}, {pb}, {c if u else 0}")
            A(f"v_rcp_f32 v{Q(mt)+12}, v{Q(mt)+12}")
            for s in range(4):
                for k in range(8): A(f"v_mul_f32 v{R(mt,8*s+k)}, v{R(mt,8*s+k)}, v{Q(mt)+12}")
                for k in range(4): A(f"v_cvt_pk_bf16_f32 v{R(mt,8*s+k)}, v{R(mt,8*s+2*k)}, v{R(mt,8*s+2*k+1)}")
                f = 4*mt + s
                A(f"ds_write_b128 v{5 if f < 15 else 6}, {vr('v', R(mt,8*s), 4)} offset:{1024*(f if f < 15 else f-15)}", mem_w=["T"] if f == 0 else [], mem_r=["T"])
        P.add(list_schedule(L, history=P.code[-10:], verbose=True))
        self.stamp()

    def outproj(self):
        P = self.P; o = self.o
        OA = 128; WR = 148; PK = 164
        F = lambda q, mt, s: (lambda n: ('a', 4*n) if n < 64 else ('v', 192 + 4*(n-64)))(q*20 + mt*4 + s)
        P(f"""
        v_lshrrev_b32 v16, 2, v0
        v_lshrrev_b32 v17, 3, v0
        v_and_b32 v17, 3, v17
        v_xor_b32 v17, s{sWave}, v17
        v_and_b32 v18, 3, v0
        v_lshlrev_b32 v16, 7, v16
        v_lshl_add_u32 v16, v17, 5, v16
        v_lshl_add_u32 v7, v18, 3, v16
        v_add_u32 v8, 0x10000, v7
        v_add_u32 v9, {XREG}, v{vL16}
        v_add_u32 v10, 81920, v{vL16}
        WAITVM wo0
        s_waitcnt lgkmcnt(0)
        s_barrier
        """)
        self.stamp()
        def oread(q, mt, s):
            f = 4*mt + s
            a = f"v9 offset:{TSTR*q + 1024*f}" if f < 15 else f"v10 offset:{5120*q + 1024*(f-15)}"
            return I(f"ds_read_b128 {reg(F(q,mt,s),4)}, {a}")
        def wread(k):
            n, s = divmod(k, 4); pos = n % 5
            return [I(f"ds_read_b64_tr_b16 {vr('v', WR + 4*(k%4) + 2*hh, 2)}, v{8 if pos == 4 else 7} offset:{(pos%4)*16384 + s*4096 + hh*2048}") for hh in range(2)]
        def flush(r):
            cv = [[I(f"v_cvt_pk_bf16_f32 v{PK+2*mt+h}, v{OA+4*mt+2*h}, v{OA+4*mt+2*h+1}") for h in range(2)] for mt in range(5)]
            st = [I(f"buffer_store_dwordx4 {vr('v', PK, 4)}, v{vL16}, {srd(sWs)}, s{sPb} offen {o.part_mod}", tag=f"ps{r}"),
                  I(f"buffer_store_dwordx4 {vr('v', PK+4, 4)}, v{vL16}, {srd(sWs)}, s{sPb} offen offset:1024 {o.part_mod}", tag=f"ps{r}"),
                  I(f"buffer_store_dwordx2 {vr('v', PK+8, 2)}, v{vL8}, {srd(sWs)}, s{sPb} offen offset:2048 {o.part_mod}", tag=f"ps{r}"),
                  I(f"s_add_u32 s{sPb}, s{sPb}, 10240"), I(f"s_sub_u32 s{sTmp3}, s{sPb}, 102400"), I(f"s_cselect_b32 s{sPb}, s{sPb}, s{sTmp3}")]
            return cv, st
        P.add(wread(0)); P.add([oread(0, mt, 0) for mt in range(5)]); P.add(wread(1)); P.add([oread(0, mt, 1) for mt in range(5)])
        M = []
        for k in range(160):
            q, s = (k // 4) % 4, k % 4
            for mt in range(5):
                c = vr('v', OA + 4*mt, 4)
                M.append(I(f"v_mfma_f32_16x16x32_bf16 {c}, {vr('v', WR + 4*(k%4), 4)}, {reg(F(q,mt,s),4)}, {c if k % 16 else 0}"))
        S = Slots(M)
        stores = {}
        for r in range(9):
            cv, st = flush(r)
            for mt in range(5):
                for ins in cv[mt]: S.put(80*r + 79 + mt, ins, 80*r + 79 + mt)
            stores[r] = st
        vm = []
        for k in range(158):
            b = 5*k; lo = b
            if (k + 2) % 4 == 0:
                n = k // 4
                p = S.put(b, I(f"WAITVM wo{n+1}"), b); p = S.put(b, I("s_barrier"), b); lo = b + 1
                if n >= 1 and n + 4 < 40:
                    for j, ins in enumerate(self.wo_dma(n + 4)): vm.append((b + 1 + max(0, 4*(min(j,5)-2)), ins))
            L = wread(k + 2)
            if k + 2 < 16: L += [oread((k+2)//4, mt, (k+2)%4) for mt in range(5)]
            p = lo
            for ins in L: p = S.put(p, ins, b + 4)
        for r in range(9):
            for j, ins in enumerate(stores[r]): vm.append((80*r + 85 + min(j, 2), ins))
        vm.sort(key=lambda x: x[0])
        p = 0
        for lo, ins in vm: p = S.put(max(p, lo), ins)
        P.add(S.emit())
        print("; outproj slot overflows:", S.over, file=sys.stderr)
        cv, st = flush(9)
        for mt in range(5): P.add(cv[mt])
        P.add(st[:3])
        self.stamp()

    def dump_regs(self, regs):
        P = self.P
        P(f"s_waitcnt vmcnt(0) lgkmcnt(0)\ns_lshl_b32 s{sTmp}, s2, 2\ns_add_u32 s{sTmp}, s{sTmp}, s{sWave}\ns_mul_i32 s{sTmp}, s{sTmp}, {len(regs)*256}\nv_lshlrev_b32 v1, 2, v0")
        for r in regs:
            P(f"buffer_store_dword {r}, v1, {srd(sMisc)}, s{sTmp} offen\ns_add_u32 s{sTmp}, s{sTmp}, 256\ns_waitcnt vmcnt(0)")

    def finish(self):
        P = self.P
        if self.o.stamps:
            P("s_waitcnt vmcnt(0)"); self.stamp()
            P("s_memrealtime s[96:97]\ns_waitcnt lgkmcnt(0)")
            P(f"s_lshl_b32 s{sTmp}, s2, 2\ns_add_u32 s{sTmp}, s{sTmp}, s{sWave}\ns_lshl_b32 s{sTmp}, s{sTmp}, 7\nv_mov_b32 v1, 0\ns_mov_b64 exec, 1")
            src = [92, 96, 94] + [STAMP0 + 2*i for i in range(self.nst)]
            for k, s in enumerate(src):
                P(f"v_mov_b32 v2, s{s}\nbuffer_store_dword v2, v1, {srd(sMisc)}, s{sTmp} offen offset:{4*k}")
        if self.o.probe is not None:
            P("s_waitcnt vmcnt(0)"); self.stamp()
            P("s_waitcnt lgkmcnt(0)\ns_sub_u32 s94, s94, s92\ns_mul_i32 s94, s94, 4\ns_add_u32 s94, s94, 10000")
            P("L_spin:\ns_memrealtime s[96:97]\ns_waitcnt lgkmcnt(0)\ns_sub_u32 s96, s96, s92\ns_cmp_lt_u32 s96, s94\ns_cbranch_scc1 L_spin")
        P("L_end:\ns_endpgm")

    def build(self):
        o = self.o
        self.prologue(); self.qproj(); self.attention()
        if o.dump == "q": self.dump_regs([f"v{STG+k}" for k in range(80)])
        elif o.dump == "o":
            R = lambda mt, k: (ACC + 32*mt + k) if mt < 4 else (112 + k if k < 16 else k)
            self.dump_regs([f"v{R(mt, 8*s+k)}" for mt in range(5) for s in range(4) for k in range(4)])
        else: self.outproj()
        self.finish()
        wl = []; nl = []
        code, _, _ = insert_waits(self.P.code, log=wl)
        code = insert_nops(code, log=nl)
        print(f"; auto waits {len(wl)}, auto nops {len(nl)} ({sum(n for n,_ in nl)} states)", file=sys.stderr)
        self.wl, self.nl = wl, nl
        Q = Prog(); Q.code = code
        return Q.text()

def reduce_kernel():
    P = Prog()
    P("s_cmp_ge_u32 s2, 320\ns_cbranch_scc1 L_rend")
    P("s_load_dwordx2 s[4:5], s[0:1], 80\ns_load_dwordx2 s[6:7], s[0:1], 96")
    P("v_lshrrev_b32 v1, 6, v0\nv_and_b32 v0, 63, v0\nv_readfirstlane_b32 s3, v1")
    P("""
    s_mul_i32 s16, s2, 6554
    s_lshr_b32 s16, s16, 16
    s_mul_i32 s17, s16, 10
    s_sub_u32 s17, s2, s17
    s_lshl_b32 s17, s17, 2
    s_add_u32 s17, s17, s3
    s_mul_i32 s18, s16, 819200
    s_mul_i32 s19, s17, 2560
    s_add_u32 s18, s18, s19
    v_lshlrev_b32 v2, 4, v0
    v_lshlrev_b32 v3, 3, v0
    s_waitcnt lgkmcnt(0)
    s_mov_b32 s8, s6
    s_mov_b32 s9, s7
    s_mov_b32 s10, 26214400
    s_mov_b32 s11, 0x20000
    s_mov_b32 s12, s4
    s_mov_b32 s13, s5
    s_mov_b32 s14, 3276800
    s_mov_b32 s15, 0x20000
    """)
    for s in range(8):
        b = 32 + 12*s
        P(f"buffer_load_dwordx4 v[{b}:{b+3}], v2, s[8:11], s18 offen")
        P(f"buffer_load_dwordx4 v[{b+4}:{b+7}], v2, s[8:11], s18 offen offset:1024")
        P(f"buffer_load_dwordx2 v[{b+8}:{b+9}], v3, s[8:11], s18 offen offset:2048")
        P("s_add_u32 s18, s18, 102400")
    P("""
    s_and_b32 s19, s16, 15
    s_lshr_b32 s20, s16, 4
    s_mul_i32 s19, s19, 204800
    s_mul_i32 s20, s20, 1280
    s_add_u32 s19, s19, s20
    s_lshl_b32 s20, s17, 5
    s_add_u32 s19, s19, s20
    v_and_b32 v4, 15, v0
    v_lshrrev_b32 v5, 4, v0
    v_mul_u32_u24 v4, 2560, v4
    v_lshl_add_u32 v4, v5, 3, v4
    """)
    for s in range(8):
        b = 32 + 12*s
        for k in range(10):
            if s == 0:
                P(f"v_lshlrev_b32 v{8+2*k}, 16, v{b+k}\nv_and_b32 v{9+2*k}, 0xffff0000, v{b+k}")
            else:
                P(f"v_lshlrev_b32 v6, 16, v{b+k}\nv_and_b32 v7, 0xffff0000, v{b+k}\nv_add_f32 v{8+2*k}, v{8+2*k}, v6\nv_add_f32 v{9+2*k}, v{9+2*k}, v7")
    for mt in range(5):
        P(f"v_cvt_pk_bf16_f32 v{32+2*mt}, v{8+4*mt}, v{9+4*mt}\nv_cvt_pk_bf16_f32 v{33+2*mt}, v{10+4*mt}, v{11+4*mt}")
        P(f"buffer_store_dwordx2 v[{32+2*mt}:{33+2*mt}], v4, s[12:15], s19 offen\ns_add_u32 s19, s19, 40960")
    P("L_rend:\ns_endpgm")
    code, _, _ = insert_waits(P.code); code = insert_nops(code)
    Q = Prog(); Q.code = code
    return Q.text()

def desc(name, vgpr, accum):
    return f""".amdhsa_kernel {name}
  .amdhsa_next_free_vgpr {vgpr}
  .amdhsa_next_free_sgpr 102
  .amdhsa_accum_offset {accum}
  .amdhsa_group_segment_fixed_size 0
  .amdhsa_kernarg_size 104
  .amdhsa_user_sgpr_count 2
  .amdhsa_user_sgpr_kernarg_segment_ptr 1
  .amdhsa_system_sgpr_workgroup_id_x 1
  .amdhsa_float_denorm_mode_32 3
.end_amdhsa_kernel
"""
def full(o):
    g = Gen(o); body = g.build()
    main = NAME + "_kernel"
    t = f"; @launch kernel={main} grid=(256,1,1) block=(256,1,1) lds={LDS}\n; @launch kernel=reduce_kernel grid=(320,1,1) block=(256,1,1) lds=0\n"
    for i in range(o.empty): t += "; @launch kernel=empty_kernel grid=(1,1,1) block=(64,1,1) lds=0\n"
    t += '.amdgcn_target "amdgcn-amd-amdhsa--gfx950"\n.text\n'
    t += f".globl {main}\n.p2align 8\n.type {main},@function\n{main}:\n" + body
    t += ".globl reduce_kernel\n.p2align 8\n.type reduce_kernel,@function\nreduce_kernel:\n" + reduce_kernel()
    if o.empty: t += ".globl empty_kernel\n.p2align 8\n.type empty_kernel,@function\nempty_kernel:\n    s_endpgm\n"
    t += '.section .rodata,"a"\n.p2align 6\n' + desc(main, 512, 256) + ".p2align 6\n" + desc("reduce_kernel", 128, 128)
    if o.empty: t += ".p2align 6\n" + desc("empty_kernel", 8, 8)
    return t, g

if __name__ == "__main__":
    o = Opt()
    out = sys.argv[1]
    for a in sys.argv[2:]:
        k, v = a.split("=", 1); setattr(o, k, eval(v))
    t, g = full(o)
    open(out, "w").write(t)
```

```python
import re

REG_RE = re.compile(r'(?<![\w.])([vas])(?:\[(\d+):(\d+)\]|(\d+))(?![\w])')

def regs_of(tok):
    out = []
    for m in REG_RE.finditer(tok):
        k = m.group(1)
        if m.group(2) is not None:
            out += [(k, i) for i in range(int(m.group(2)), int(m.group(3)) + 1)]
        else:
            out.append((k, int(m.group(4))))
    for sp in ("vcc", "exec", "m0"):
        if re.search(r'(?<![\w])' + sp + r'(?![\w])', tok):
            out.append(('x', sp))
    return out

TRANS = ("v_exp_f32", "v_rcp_f32", "v_log_f32", "v_rsq_f32", "v_sqrt_f32")
SCC_W = ("s_add_", "s_addc_", "s_sub_", "s_subb_", "s_and_", "s_or_", "s_xor_", "s_lshl_", "s_lshr_", "s_cmp", "s_bitcmp",
         "s_min_", "s_max_", "s_andn2_", "s_ashr_", "s_addk_", "s_bfe_", "s_not_", "s_lshl1_", "s_lshl2_", "s_lshl3_", "s_lshl4_", "s_bcnt")
SCC_R = ("s_addc_", "s_subb_", "s_cselect_", "s_cbranch_scc", "s_cmov")

class I:
    __slots__ = ("text", "op", "kind", "defs", "uses", "tag", "mem_r", "mem_w", "srcC", "prio", "cost", "note", "idx", "cond", "at")
    def __init__(self, text, tag=None, mem_r=(), mem_w=(), note=None):
        self.text = text.strip(); self.tag = tag; self.note = note
        self.mem_r = set(mem_r); self.mem_w = set(mem_w); self.srcC = set(); self.prio = 0; self.cond = False; self.at = 0
        t = self.text
        if t.endswith(":") or t.startswith(".") or t.startswith(";"):
            self.op = t; self.kind = "label" if t.endswith(":") else "dir"; self.defs = set(); self.uses = set(); self.cost = 0; return
        sp = t.split(None, 1); op = sp[0]; self.op = op
        ops = [x.strip() for x in sp[1].split(",")] if len(sp) > 1 else []
        R = [regs_of(x) for x in ops]
        flat = lambda L: set(r for x in L for r in x)
        defs, uses = set(), set(); cost = 1
        if op.startswith("v_mfma"):
            kind = "mfma"; defs = set(R[0]); uses = flat(R[1:]); self.srcC = set(R[3]); cost = 2
        elif op.startswith("v_permlane") and "swap" in op:
            kind = "permlane"; defs = flat(R[:2]); uses = flat(R[:2])
        elif op.startswith("v_cmp"):
            kind = "valu"; defs = set(R[0]); uses = flat(R[1:])
        elif op.startswith("v_readfirstlane") or op.startswith("v_readlane"):
            kind = "readlane"; defs = set(R[0]); uses = flat(R[1:])
        elif op.startswith("v_"):
            kind = "trans" if op.startswith(TRANS) else "valu"
            if kind == "trans": cost = 2
            defs = set(R[0]); uses = flat(R[1:])
            if op.startswith(("v_fmac", "v_dot2c", "v_writelane")): uses |= defs
            if "_co_" in op: defs |= set(R[1]); uses = flat(R[2:])
        elif op.startswith("buffer_load") or op.startswith("global_load"):
            cost = 2
            if re.search(r'\blds\b', t):
                kind = "dma"; uses = flat(R) | {('x', 'm0')}
            else:
                kind = "vload"; defs = set(R[0]); uses = flat(R[1:])
        elif op.startswith("buffer_store") or op.startswith("global_store"):
            kind = "vstore"; uses = flat(R); cost = 2
        elif op.startswith("buffer_atomic") or op.startswith("global_atomic"):
            kind = "vstore"; uses = flat(R); cost = 2
            if re.search(r'\bsc0\b', t): kind = "vload"; defs = set(R[0])
        elif op.startswith("ds_read"):
            kind = "dsread"; defs = set(R[0]); uses = flat(R[1:])
        elif op.startswith("ds_write"):
            kind = "dswrite"; uses = flat(R)
        elif op.startswith("s_load") or op.startswith("s_memtime") or op.startswith("s_memrealtime"):
            kind = "smem"; defs = set(R[0]); uses = flat(R[1:])
        elif op == "s_waitcnt": kind = "wait"
        elif op == "s_nop": kind = "nop"
        elif op == "s_barrier": kind = "barrier"
        elif op.startswith("s_cbranch") or op in ("s_branch", "s_endpgm", "s_setpc_b64", "s_swappc_b64"):
            kind = "branch"; uses = flat(R)
            if "vcc" in op: uses.add(('x', 'vcc'))
            if "exec" in op: uses.add(('x', 'exec'))
        elif op.startswith("WAIT"):
            kind = "pwait"
        elif op.startswith("s_"):
            kind = "salu"
            if op.startswith(("s_cmp", "s_bitcmp", "s_setprio", "s_sleep")): uses = flat(R)
            else:
                defs = set(R[0]); uses = flat(R[1:])
                if op.startswith(("s_addk", "s_mulk", "s_cmov")): uses |= defs
                if "saveexec" in op: defs.add(('x', 'exec')); uses.add(('x', 'exec'))
        else:
            raise ValueError("unknown instr: " + t)
        if op.startswith(SCC_W) or "saveexec" in op: defs.add(('x', 'scc'))
        if op.startswith(SCC_R): uses.add(('x', 'scc'))
        self.kind = kind; self.defs = defs; self.uses = uses; self.cost = cost
    def __repr__(self): return self.text

VM = ("vload", "vstore", "dma")
LG = ("dsread", "dswrite", "smem")
VALU = ("valu", "trans", "permlane", "readlane")

def parse_wait(t):
    vm = re.search(r'vmcnt\((\d+)\)', t); lg = re.search(r'lgkmcnt\((\d+)\)', t)
    return (int(vm.group(1)) if vm else None, int(lg.group(1)) if lg else None)

def insert_waits(code, vmq=None, lgq=None, log=None):
    Q = {"vm": list(vmq or []), "lg": list(lgq or [])}; out = []
    total = {}; seen = {}
    for ins in code:
        if ins.tag: total[ins.tag] = total.get(ins.tag, 0) + 1
    def younger(q, i): return sum(1 for o in q[i+1:] if not o.cond)
    def retire(k, n):
        q = Q[k]
        if k == "lg" and n > 0 and any(o.kind == "smem" for o in q): return
        cnt = 0; cut = 0
        if n == 0: cut = len(q)
        else:
            for i in range(len(q) - 1, -1, -1):
                if not q[i].cond:
                    cnt += 1
                    if cnt == n: cut = i; break
        Q[k] = q[cut:]
    def do_wait(vm, lg, auto, ins):
        parts = []
        if vm is not None:
            vm = min(vm, 63); parts.append(f"vmcnt({vm})")
            if not ins.cond: retire("vm", vm)
        if lg is not None:
            if any(q.kind == "smem" for q in Q["lg"]): lg = 0
            lg = min(lg, 15); parts.append(f"lgkmcnt({lg})")
            if not ins.cond: retire("lg", lg)
        w = I("s_waitcnt " + " ".join(parts)); w.cond = ins.cond; out.append(w)
        if auto and log is not None: log.append((w.text, ins.text))
    for ins in code:
        if ins.kind == "pwait":
            sp = ins.text.split(); tags = set(sp[1:])
            for tg in tags: assert total.get(tg, 0) > 0 and seen.get(tg, 0) == total[tg], f"wait on tag {tg} before all its ops were issued"
            q = Q["vm"] if sp[0] == "WAITVM" else Q["lg"]
            pos = [i for i, o in enumerate(q) if o.tag in tags]
            if pos:
                n = younger(q, max(pos))
                do_wait(n if sp[0] == "WAITVM" else None, n if sp[0] == "WAITLG" else None, False, ins)
            continue
        if ins.kind == "wait":
            vm, lg = parse_wait(ins.text)
            if not ins.cond:
                if vm is not None: retire("vm", vm)
                if lg is not None: retire("lg", lg)
            out.append(ins); continue
        touch = ins.uses | ins.defs
        nv = nl = None
        for i, o in enumerate(Q["vm"]):
            if o.defs & touch and not (ins.kind == "vload" and not (o.defs & ins.uses)):
                nv = younger(Q["vm"], i)
        for i, o in enumerate(Q["lg"]):
            if o.defs & touch and not (ins.kind == "dsread" and o.kind == "dsread" and not (o.defs & ins.uses)):
                nl = younger(Q["lg"], i)
        if nv is not None or nl is not None: do_wait(nv, nl, True, ins)
        out.append(ins)
        if ins.tag: seen[ins.tag] = seen.get(ins.tag, 0) + 1
        if ins.kind in VM:
            Q["vm"].append(ins)
            assert sum(1 for o in Q["vm"] if not o.cond) <= 50, "vmcnt overflow at " + ins.text
        if ins.kind in LG: Q["lg"].append(ins)
    return out, Q["vm"], Q["lg"]

def need_states(p, c):
    n = 0
    vdefs = {r for r in p.defs if r[0] in "va"}
    sdefs = {r for r in p.defs if r[0] == "s" or r == ('x', 'vcc')}
    if p.kind in VALU:
        if c.kind == "mfma" and vdefs & c.uses: n = max(n, 2)
        if c.kind == "permlane" and vdefs & c.uses: n = max(n, 2)
        if c.kind == "readlane" and vdefs & c.uses: n = max(n, 1)
        if "dpp" in c.text and vdefs & c.uses: n = max(n, 2)
        if p.kind == "trans" and c.kind in VALU + ("vstore", "dswrite") and vdefs & c.uses: n = max(n, 1)
        if sdefs:
            if c.kind in VM and sdefs & c.uses: n = max(n, 5)
            if c.kind in VALU and sdefs & c.uses: n = max(n, 4 if c.kind == "readlane" else 2)
            if c.kind in ("salu", "branch", "smem") and sdefs & c.uses: n = max(n, 1)
            if c.kind == "branch" and ('x', 'vcc') in (p.defs & c.uses): n = max(n, 5)
    if p.kind == "mfma":
        if c.kind == "mfma":
            ab = c.uses - c.srcC
            if p.defs & ab: n = max(n, 8)
            if p.defs & c.srcC and (p.defs != c.srcC or p.op != c.op): n = max(n, 6)
            if p.defs & c.defs and not (p.defs & c.srcC): n = max(n, 0)
        elif c.kind in VALU + VM + ("dsread", "dswrite"):
            if p.defs & (c.uses | c.defs): n = max(n, 8)
            if c.kind in VALU and p.srcC & c.defs: n = max(n, 3)
    if p.kind == "salu" and ('x', 'm0') in p.defs and c.kind == "dma": n = max(n, 1)
    if p.kind == "salu" and ('x', 'exec') in p.defs and c.kind in ("permlane",): n = max(n, 1)
    if p.kind == "vstore" and ("x4" in p.op or "x3" in p.op):
        data = {r for r in p.uses if r[0] in "va"}
        if data & c.defs: n = max(n, 2)
    return n

def states_of(ins):
    if ins.kind in ("label", "dir"): return 0
    if ins.kind == "nop": return int(ins.text.split()[1]) + 1
    return 1

def insert_nops(code, log=None, history=None):
    out = list(history or []); base = len(out)
    for ins in code:
        if ins.kind not in ("label", "dir", "nop", "wait"):
            dist = 0; need = 0
            for p in reversed(out):
                k = need_states(p, ins)
                if k - dist > need: need = k - dist
                if ins.cond or not p.cond: dist += states_of(p)
                if dist >= 8: break
            if need > 0:
                nop = I(f"s_nop {need-1}"); nop.cond = ins.cond; out.append(nop)
                if log is not None: log.append((need, ins.text))
        out.append(ins)
    return out[base:]

class Prog:
    def __init__(self): self.code = []
    def __call__(self, text, **kw):
        for line in text.split("\n"):
            line = line.split(";")[0].strip() if not line.strip().startswith(";") else line.strip()
            if line: self.code.append(I(line, **kw))
    def add(self, L): self.code += L
    def text(self): return "\n".join(("" if i.kind in ("label", "dir") else "    ") + i.text for i in self.code) + "\n"

def vr(k, a, n=1): return f"{k}{a}" if n == 1 else f"{k}[{a}:{a+n-1}]"

class Slots:
    def __init__(self, mfmas, cap=2):
        self.m = mfmas; self.n = len(mfmas); self.cap = [cap] * self.n; self.ds = [0] * self.n
        self.g = [[] for _ in mfmas]; self.over = 0
    def put(self, pos, ins, hi=None):
        if isinstance(ins, str): ins = I(ins)
        hi = self.n - 1 if hi is None else min(hi, self.n - 1)
        pos = max(0, min(pos, hi)); isds = ins.kind in ("dsread", "dswrite")
        p = pos
        while p <= hi and (self.cap[p] < ins.cost or (isds and self.ds[p])): p += 1
        if p > hi:
            p = max(range(pos, hi + 1), key=lambda q: (self.cap[q] - (2 if isds and self.ds[q] else 0), q)); self.over += 1
        self.cap[p] -= ins.cost; self.ds[p] += isds; self.g[p].append(ins); return p
    def put_group(self, pos, L, cost, hi=None):
        g = I("s_nop 0"); g.cost = cost; g.note = L
        return self.put(pos, g, hi)
    def emit(self):
        out = []
        for m, g in zip(self.m, self.g):
            out.append(m)
            for x in g:
                if isinstance(x.note, list): out += x.note
                else: out.append(x)
        return out

def dep_latency(p, c, raw):
    base = 4 * p.cost
    if not raw: return base
    if p.kind == "mfma":
        if c.kind == "mfma" and p.op == c.op and p.defs == c.srcC and not (p.defs & (c.uses - c.srcC)): return 16
        return 32
    if p.kind == "dsread": return 110
    if p.kind == "vload": return 600
    if p.kind == "trans": return 12
    return base

def list_schedule(code, history=(), verbose=False, keep_order=("vm",)):
    n = len(code)
    preds = [dict() for _ in range(n)]; succs = [dict() for _ in range(n)]
    last_w = {}; readers = {}
    def edge(a, b, lat):
        if a == b: return
        if preds[b].get(a, -1) < lat: preds[b][a] = lat; succs[a][b] = lat
    last_vm = last_ds = last_sync = None
    for i, ins in enumerate(code):
        uses = set(ins.uses) | {('m', t) for t in ins.mem_r}
        defs = set(ins.defs) | {('m', t) for t in ins.mem_w}
        for r in uses:
            if r in last_w: edge(last_w[r], i, dep_latency(code[last_w[r]], ins, r[0] != 'm'))
        for r in defs:
            if r in last_w: edge(last_w[r], i, dep_latency(code[last_w[r]], ins, code[last_w[r]].kind in ("mfma", "dsread", "vload") and r[0] != 'm'))
            for q in readers.get(r, ()): edge(q, i, dep_latency(code[q], ins, False))
        for r in uses: readers.setdefault(r, []).append(i)
        for r in defs: last_w[r] = i; readers[r] = []
        if ins.kind in VM:
            if last_vm is not None: edge(last_vm, i, 8)
            last_vm = i
        if ins.kind in ("dsread", "dswrite") and "ds" in keep_order:
            if last_ds is not None: edge(last_ds, i, 4)
            last_ds = i
    prio = [0] * n
    for i in reversed(range(n)):
        prio[i] = max([lat + prio[s] for s, lat in succs[i].items()] + [4 * code[i].cost])
    prio = [prio[i] + code[i].prio for i in range(n)]
    out = list(history); base = len(out)
    npred = [len(p) for p in preds]; ready_t = [c.at for c in code]
    cand = [i for i in range(n) if npred[i] == 0]
    t = 0; pipe = 0; lastds = -100; stall = 0
    def states_ok(ins):
        dist = 0
        for p in reversed(out):
            if need_states(p, ins) > dist: return False
            dist += states_of(p)
            if dist >= 8: break
        return True
    while cand:
        ok = [i for i in cand if ready_t[i] <= t and states_ok(code[i])]
        mf = [i for i in ok if code[i].kind == "mfma"]
        other = [i for i in ok if code[i].kind != "mfma" and not (code[i].kind in ("dsread", "dswrite") and t - lastds < 12)]
        pick = None
        if mf and pipe <= t: pick = max(mf, key=lambda i: (prio[i], -i))
        elif other:
            room = (pipe - t) if mf else 99
            fit = [i for i in other if 4 * code[i].cost <= room]
            pick = max(fit or other, key=lambda i: (prio[i], -i))
        if pick is None:
            blocked_states = [i for i in cand if ready_t[i] <= t + 4 and not states_ok(code[i])]
            if blocked_states: out.append(I("s_nop 0"))
            t += 4; stall += 4
            continue
        ins = code[pick]; out.append(ins); cand.remove(pick)
        if ins.kind == "mfma": pipe = t + 16
        if ins.kind in ("dsread", "dswrite"): lastds = t
        for s, lat in succs[pick].items():
            ready_t[s] = max(ready_t[s], t + lat); npred[s] -= 1
            if npred[s] == 0: cand.append(s)
        t += 4 * ins.cost
    if verbose:
        import sys
        print(f"; list_schedule: {n} instrs, est {t} cycles, idle {stall}", file=sys.stderr)
    return out[base:]
```

```python
import sys, math, struct
from asmlib import *

NAME = "concat_heads__gqa_block_cached__gqa_block_cached__near_ridge"
LDS = 163840
sX, sW, sK, sV, sWo, sIn, sOut, sFl, sDb = 4, 8, 24, 28, 32, 36, 40, 44, 48
sWave = 3
pX, pK, pV, pWq, pWo, pWs, pOut, pDbg = 52, 54, 56, 58, 60, 62, 64, 66
(sB, sJ, sBr, sP, sSelLo, sSelHi, sT, sTmp, sXp, sXm, sC, sBlk, sW4k, sTmp2, sPb, sTmp3, sCls,
 sSm, sSe, sRetry, sOm, sOe, sFlip, sRho) = range(78, 102)
STAMPS = [52, 54, 56, 58, 60, 64, 66, 74, 76, 0]
def srd(b): return f"s[{b}:{b+3}]"
vWe0, vWe1, vWo0, vWo1, vXa, vXb, vXd, vKd, vVd, vKr, vVr, vTa, vTb, vL16, vL8 = range(1, 16)
WF = 16; STG = 32; ACC = 128
aACC4 = 0; aXF = 32; aK = 72; aV0 = 152; aV1 = 184; aV2 = 216; aONE = 232; aPARK = 236
XREG = 102400; TSTR = 15360; USZ = 4224
FLAGS = 0x2000000; FSTR = 4096
OOB = 0x40000000
PARK = ["Fs", "Od", "Wr", "M16", "M8", "S16", "S8", "E", "X0", "X1", "I0", "I1", "Lw", "Lr", "O0", "O2", "Pa"]
def unpark(name, v): return f"v_accvgpr_read_b32 v{v}, a{aPARK + PARK.index(name)}"

class Opt:
    stamps = False; stq = (); sto = (); stm = (0,1,2,3,4,5); probe = None
    kv_mod = "nt"; w_mod = ""; x_mod = ""; wo_mod = ""; out_mod = ""
    touch = 40000
    flip = 1
    ncls = 4
    bursts = [(["x2", 0], 1, 1, 5), ([1, 2, 3], 6, 1, 10), ([4, 5], 11, 1, 15)]
    slot = {0: 0, 1: 0, 2: 1, 3: 2, 4: 0, 5: 1, 6: 0, 7: 1, 8: 2, 9: 3}
    late_loop = [6, 7]
    late_att = [8, 9]
    late_at = 0; late_pace = 250; vread_at = (1500, 2000, 3200, 3800)
    wo_at = 2400; wo_pace = 150
    x_issue = {1: 0, 3: 5, 4: 10}
    bias = 600

def acc(t, mt): return ("v", ACC + 32*mt + 4*t) if mt < 4 else ("a", aACC4 + 4*t)
def reg(kr, n): return vr(kr[0], kr[1], n)
def R(mt, k): return (ACC + 32*mt + k) if mt < 4 else (112 + k if k < 16 else k)
def Q(mt): return (64, 80, 32, 48, 96)[mt]

class Gen:
    def __init__(self, o):
        self.o = o; self.P = Prog(); self.nst = 0; self.tail = Prog(); self.nlab = 0
    def mstamp(self, k):
        if k in self.o.stm or self.o.probe is not None: self.stamp()
    def stamp(self, L=None):
        L = self.P.code if L is None else L
        if self.o.probe is not None:
            if self.nst == self.o.probe: L.append(I("s_memrealtime s[70:71]"))
            self.nst += 1
        if not self.o.stamps: return
        i = STAMPS[self.nst]; self.nst += 1
        L.append(I(f"{'s_memtime' if self.o.stamps == 'cyc' else 's_memrealtime'} s[{i}:{i+1}]"))
    def mk(self, L, d, p, off, size):
        for t in (f"s_add_u32 s{d}, s{p}, {off}", f"s_addc_u32 s{d+1}, s{p+1}, 0", f"s_mov_b32 s{d+2}, {size}", f"s_mov_b32 s{d+3}, 0x20000"): L.append(I(t))

    def prologue(self):
        P = self.P; o = self.o
        mk = lambda *a: self.mk(P.code, *a)
        P("s_cmp_ge_u32 s2, 256\ns_cbranch_scc1 L_end")
        if o.stamps: P("s_memrealtime s[68:69]\n" + ("s_memtime" if o.stamps == "cyc" else "s_memrealtime") + " s[70:71]")
        if o.probe is not None: P("s_memrealtime s[68:69]\ns_memrealtime s[70:71]")
        P(f"""
        s_bfe_u32 s{sBr}, s2, 0x10002
        s_mul_i32 s{sTmp}, s{sBr}, 40
        s_add_u32 s{sTmp2}, s{sTmp}, 32
        s_load_dwordx8 s[52:59], s[0:1], s{sTmp}
        s_load_dwordx2 s[60:61], s[0:1], s{sTmp2}
        s_load_dwordx4 s[64:67], s[0:1], 80
        s_load_dwordx2 s[62:63], s[0:1], 96
        v_lshrrev_b32 v1, 6, v0
        v_and_b32 v0, 63, v0
        v_readfirstlane_b32 s{sWave}, v1
        """)
        if o.touch:
            P(f"""
            s_getpc_b64 s[44:45]
            s_mov_b32 s46, {o.touch}
            s_mov_b32 s47, 0x20000
            s_lshr_b32 s{sTmp}, s2, 3
            s_lshl_b32 s{sTmp}, s{sTmp}, 2
            s_add_u32 s{sTmp}, s{sTmp}, s{sWave}
            s_lshl_b32 s{sTmp}, s{sTmp}, 9
            v_lshlrev_b32 v22, 7, v0
            s_mov_b64 exec, 15
            buffer_load_dword v31, v22, s[44:47], s{sTmp} offen
            s_mov_b64 exec, -1
            """)
        P(f"""
        s_lshr_b32 s{sB}, s2, 4
        s_and_b32 s{sJ}, s2, 3
        s_lshl_b32 s{sJ}, s{sJ}, 1
        s_bfe_u32 s{sTmp}, s2, 0x10003
        s_add_u32 s{sJ}, s{sJ}, s{sTmp}
        s_mul_i32 s{sTmp}, s{sTmp}, 5
        s_cmp_ge_u32 s{sB}, 10
        s_cselect_b32 s{sFlip}, {o.flip}, 0
        s_cselect_b32 s{sTmp2}, 10, 0
        s_sub_u32 s{sRho}, s{sB}, s{sTmp2}
        s_add_u32 s{sP}, s{sRho}, s{sTmp}
        s_sub_u32 s{sTmp2}, s{sP}, 10
        s_cselect_b32 s{sP}, s{sP}, s{sTmp2}
        s_and_b32 s{sTmp}, s{sWave}, 1
        s_add_u32 s{sXp}, s{sP}, s{sTmp}
        s_sub_u32 s{sTmp2}, s{sXp}, 10
        s_cselect_b32 s{sXp}, s{sXp}, s{sTmp2}
        s_lshl_b32 s{sXp}, s{sXp}, 7
        s_lshl_b32 s{sP}, s{sP}, 19
        s_mul_i32 s{sXm}, s{sTmp}, 10240
        s_lshr_b32 s{sTmp}, s{sWave}, 1
        s_mul_i32 s{sTmp2}, s{sTmp}, 5120
        s_add_u32 s{sXm}, s{sXm}, s{sTmp2}
        s_mul_i32 s{sTmp3}, s{sTmp}, 51200
        v_lshrrev_b32 v16, 4, v0
        v_and_b32 v17, 15, v0
        v_lshrrev_b32 v18, 3, v0
        v_and_b32 v19, 7, v0
        v_and_b32 v20, 6, v18
        v_xor_b32 v20, v19, v20
        v_mul_u32_u24 v29, 1280, v18
        v_lshl_add_u32 v{vXd}, v20, 4, v29
        v_add_u32 v{vXd}, s{sTmp3}, v{vXd}
        v_lshlrev_b32 v21, 16, v16
        v_lshl_add_u32 v21, v17, 4, v21
        s_lshl_b32 s{sTmp}, s{sFlip}, 18
        s_xor_b32 s{sTmp2}, s{sTmp}, 0x40000
        v_add_u32 v{vWe0}, s{sTmp}, v21
        v_add_u32 v{vWo0}, s{sTmp2}, v21
        v_add_u32 v{vWe1}, 0x8000, v{vWe0}
        v_add_u32 v{vWo1}, 0x8000, v{vWo0}
        s_mul_i32 s{sTmp}, s{sB}, 102400
        s_lshl_b32 s{sTmp2}, s{sJ}, 2
        s_add_u32 s{sTmp2}, s{sTmp2}, s{sWave}
        s_waitcnt lgkmcnt(0)
        """)
        mk(sX, pX, f"s{sTmp}", 102400)
        self.xgroup(0, P.code)
        P(f"s_lshl_b32 s{sTmp}, s{sTmp2}, 8")
        W0 = []; self.wloads(0, W0)
        for j in range(4):
            mk(sW + 4*j, pWq, f"s{sTmp}", 640*8192 - 3*8192 - 31*256)
            P.add([W0[j]])
            if j < 3: P(f"s_add_u32 s{sTmp}, s{sTmp}, 8192")
        P(f"s_lshl_b32 s{sTmp}, s{sB}, 5\ns_add_u32 s{sTmp}, s{sTmp}, s{sTmp2}\ns_mul_i32 s{sTmp}, s{sTmp}, 20480")
        mk(sK, pK, f"s{sTmp}", 20480); mk(sV, pV, f"s{sTmp}", 20480)
        P(f"s_mul_i32 s{sTmp}, s{sJ}, 655360"); mk(sWo, pWo, f"s{sTmp}", 655360)
        P(f"s_lshl_b32 s{sTmp3}, s{sBr}, 4\ns_add_u32 s{sTmp3}, s{sTmp3}, s{sB}\ns_mul_i32 s{sTmp}, s{sTmp3}, 819200")
        mk(sIn, pWs, f"s{sTmp}", 819200)
        P(f"s_mul_i32 s{sTmp}, s{sB}, 204800\ns_mul_i32 s{sTmp2}, s{sBr}, 1280\ns_add_u32 s{sTmp}, s{sTmp}, s{sTmp2}")
        mk(sOut, pOut, f"s{sTmp}", 203520)
        P(f"s_mul_i32 s{sTmp}, s{sTmp3}, {FSTR}\ns_add_u32 s{sTmp}, s{sTmp}, {FLAGS}")
        mk(sFl, pWs, f"s{sTmp}", 32)
        P(f"s_lshl_b32 s{sTmp}, s{sTmp3}, 3"); mk(sDb, pDbg, f"s{sTmp}", 4)
        c = math.log2(math.e) / math.sqrt(128.0)
        park = lambda name, v: f"v_accvgpr_write_b32 a{aPARK + PARK.index(name)}, v{v}"
        P(f"""
        s_mov_b32 s{sSelLo}, 0x05040100
        s_mov_b32 s{sSelHi}, 0x07060302
        s_mov_b32 s{sC}, {hex(struct.unpack('<I', struct.pack('<f', c))[0])}
        s_mov_b32 s{sRetry}, 200000
        s_mul_i32 s{sT}, s{sWave}, {TSTR}
        s_add_u32 s{sT}, s{sT}, {XREG}
        s_lshl_b32 s{sW4k}, s{sWave}, 12
        s_lshr_b32 s{sCls}, s2, 3
        s_mul_i32 s{sTmp}, s{sCls}, {(256 + o.ncls - 1)//o.ncls}
        s_lshr_b32 s{sTmp}, s{sTmp}, 8
        s_mul_i32 s{sTmp}, s{sTmp}, {o.ncls}
        s_sub_u32 s{sCls}, s{sCls}, s{sTmp}
        v_lshlrev_b32 v{vL16}, 4, v0
        v_lshlrev_b32 v{vL8}, 3, v0
        v_lshlrev_b32 v26, 8, v0
        v_add_u32 v26, s{sW4k}, v26
        s_lshl_b32 s{sTmp}, s{sJ}, 2
        v_add_u32 v26, s{sTmp}, v26
        v_mov_b32 v27, 0
        """)
        P(f"buffer_store_dword v27, v26, {srd(sFl)}, 0 offen sc1", tag="clr")
        P(f"""
        {park("Fs", 26)}
        v_and_b32 v20, 6, v17
        v_xor_b32 v20, v16, v20
        v_lshlrev_b32 v21, 7, v17
        v_lshl_add_u32 v21, v20, 4, v21
        s_lshl_b32 s{sTmp}, s{sFlip}, 6
        v_xor_b32 v{vXa}, s{sTmp}, v21
        v_xor_b32 v{vXb}, 64, v{vXa}
        v_xor_b32 v20, v17, v16
        v_lshlrev_b32 v21, 8, v16
        v_lshl_add_u32 v{vKd}, v20, 4, v21
        v_lshlrev_b32 v30, 1, v16
        v_xor_b32 v20, v17, v30
        v_lshl_add_u32 v{vVd}, v20, 4, v21
        v_lshrrev_b32 v22, 2, v17
        v_and_b32 v23, 3, v17
        v_and_b32 v24, 1, v22
        v_lshrrev_b32 v25, 1, v22
        v_mul_u32_u24 v24, 2176, v24
        v_lshl_add_u32 v24, v25, 10, v24
        v_mul_u32_u24 v25, 272, v23
        v_add_u32 v24, v24, v25
        v_lshl_add_u32 v24, v16, 6, v24
        v_add_u32 v{vKr}, s{sT}, v24
        v_and_b32 v24, 1, v16
        v_lshrrev_b32 v25, 1, v16
        v_mul_u32_u24 v24, 2176, v24
        v_lshl_add_u32 v24, v25, 10, v24
        v_mul_u32_u24 v25, 288, v22
        v_add_u32 v24, v24, v25
        v_lshl_add_u32 v24, v23, 3, v24
        v_add_u32 v{vVr}, s{sT}, v24
        v_mov_b32 v20, 0x3f803f80
        v_accvgpr_write_b32 a{aONE}, v20
        v_accvgpr_write_b32 a{aONE+1}, v20
        v_accvgpr_write_b32 a{aONE+2}, v20
        v_accvgpr_write_b32 a{aONE+3}, v20
        v_xor_b32 v20, v19, v30
        v_lshl_add_u32 v20, v20, 4, v29
        s_mul_i32 s{sTmp}, s{sWave}, 40960
        v_add_u32 v20, s{sTmp}, v20
        {park("Od", 20)}
        v_lshrrev_b32 v20, 2, v0
        v_and_b32 v21, 3, v18
        v_xor_b32 v21, s{sWave}, v21
        v_lshlrev_b32 v20, 7, v20
        v_lshl_add_u32 v20, v21, 5, v20
        v_lshl_add_u32 v20, v23, 3, v20
        {park("Wr", 20)}
        s_add_u32 s{sOm}, s{sJ}, s{sRho}
        s_sub_u32 s{sTmp}, s{sOm}, 10
        s_cselect_b32 s{sOm}, s{sOm}, s{sTmp}
        s_add_u32 s{sBlk}, s{sOm}, 1
        s_sub_u32 s{sTmp}, s{sBlk}, 10
        s_cselect_b32 s{sBlk}, s{sBlk}, s{sTmp}
        s_mul_i32 s{sPb}, s{sBlk}, 10240
        s_lshl_b32 s{sBlk}, s{sBlk}, 7
        s_lshr_b32 s{sSe}, s{sJ}, 2
        s_add_u32 s{sOe}, s{sSe}, s{sRho}
        s_add_u32 s{sOe}, s{sOe}, 8
        s_sub_u32 s{sTmp}, s{sOe}, 10
        s_cselect_b32 s{sOe}, s{sOe}, s{sTmp}
        s_lshl_b32 s{sOe}, s{sOe}, 2
        s_and_b32 s{sTmp}, s{sJ}, 3
        s_add_u32 s{sOe}, s{sOe}, s{sTmp}
        s_add_u32 s{sSe}, s{sSe}, 7
        s_mul_i32 s{sSe}, s{sSe}, 102400
        s_lshl_b32 s{sTmp}, s{sOm}, 2
        s_add_u32 s{sTmp}, s{sTmp}, s{sWave}
        s_mul_i32 s{sTmp}, s{sTmp}, 2560
        v_add_u32 v20, s{sTmp}, v{vL16}
        v_add_u32 v21, s{sTmp}, v{vL8}
        {park("M16", 20)}
        {park("M8", 21)}
        s_mul_i32 s{sTmp}, s{sJ}, 102400
        s_mul_i32 s{sTmp2}, s{sWave}, 2560
        s_add_u32 s{sTmp}, s{sTmp}, s{sTmp2}
        v_add_u32 v20, s{sTmp}, v{vL16}
        v_add_u32 v21, s{sTmp}, v{vL8}
        {park("S16", 20)}
        {park("S8", 21)}
        s_mul_i32 s{sTmp}, s{sOe}, 2560
        s_mul_i32 s{sTmp2}, s{sWave}, 640
        s_add_u32 s{sTmp}, s{sTmp}, s{sTmp2}
        v_add_u32 v20, s{sTmp}, v{vL16}
        v_cmp_gt_u32 vcc, 40, v0
        v_mov_b32 v24, {OOB}
        s_lshl_b32 s{sOm}, s{sOm}, 7
        s_lshl_b32 s{sOe}, s{sOe}, 5
        v_cndmask_b32 v20, v24, v20, vcc
        {park("E", 20)}
        s_add_u32 s{sSm}, s{sJ}, 9
        s_sub_u32 s{sTmp}, s{sSm}, 10
        s_cselect_b32 s{sSm}, s{sSm}, s{sTmp}
        s_mul_i32 s{sSm}, s{sSm}, 102400
        v_add_u32 v22, s{sTmp2}, v{vL16}
        v_lshrrev_b32 v23, 10, v22
        v_bfe_u32 v25, v22, 4, 6
        v_bfe_u32 v26, v22, 3, 6
        v_cmp_gt_u32 s[0:1], 2, v23
        v_mov_b32 v27, 2560
        v_mov_b32 v28, 40960
        v_cndmask_b32 v25, v26, v25, s[0:1]
        v_cndmask_b32 v27, v27, v28, s[0:1]
        v_and_b32 v26, 15, v25
        v_lshl_add_u32 v26, v23, 5, v26
        v_lshrrev_b32 v25, 4, v25
        v_mul_u32_u24 v26, 2560, v26
        v_lshl_add_u32 v20, v25, 3, v26
        v_cndmask_b32 v20, v24, v20, vcc
        v_add_u32 v21, v20, v27
        {park("X0", 20)}
        {park("X1", 21)}
        v_lshlrev_b32 v20, 2, v16
        v_sub_u32 v20, v17, v20
        v_mov_b32 v22, 0x3f80
        v_mov_b32 v23, 0x3f800000
        v_cmp_eq_u32 vcc, 0, v20
        v_cmp_eq_u32 s[0:1], 1, v20
        v_mul_u32_u24 v25, 144, v17
        v_cndmask_b32 v21, 0, v22, vcc
        v_cndmask_b32 v21, v21, v23, s[0:1]
        v_cmp_eq_u32 vcc, 2, v20
        v_cmp_eq_u32 s[0:1], 3, v20
        {park("I0", 21)}
        v_cndmask_b32 v21, 0, v22, vcc
        v_cndmask_b32 v21, v21, v23, s[0:1]
        {park("I1", 21)}
        v_lshl_add_u32 v25, v16, 3, v25
        s_lshl_b32 s{sTmp}, s{sWave}, 5
        s_add_u32 s{sTmp}, s{sTmp}, 81920
        v_add_u32 v25, s{sTmp}, v25
        {park("Lw", 25)}
        s_mul_i32 s{sTmp}, s{sWave}, 20
        v_add_u32 v22, s{sTmp}, v18
        v_mul_u32_u24 v20, 144, v22
        v_lshl_add_u32 v20, v19, 4, v20
        v_add_u32 v20, 81920, v20
        {park("Lr", 20)}
        v_mul_u32_u24 v20, 2560, v22
        v_lshl_add_u32 v20, v19, 4, v20
        v_cmp_gt_u32 vcc, 32, v0
        {park("O0", 20)}
        v_add_u32 v20, 40960, v20
        v_cndmask_b32 v20, v24, v20, vcc
        {park("O2", 20)}
        v_lshlrev_b32 v20, 2, v19
        {park("Pa", 20)}
        """)
        P.add(W0[4:])
        self.wloads(1, P.code)

    def xgroup(self, g, L):
        for e in range(5):
            if e % 4 == 0: L.append(I(f"s_add_u32 m0, s{sXm}, {g*20480 + e*1024}"))
            L.append(I(f"s_add_u32 s{sTmp3}, s{sXp}, {e*10240 - (e%4)*1024}"))
            L.append(I(f"buffer_load_dwordx4 v{vXd}, {srd(sX)}, s{sTmp3} offen offset:{(e%4)*1024} {self.o.x_mod} lds", tag=f"x{g}"))
        if g < 4:
            L.append(I(f"s_add_u32 s{sXp}, s{sXp}, 256"))
            L.append(I(f"s_sub_u32 s{sTmp3}, s{sXp}, 1280"))
            L.append(I(f"s_cselect_b32 s{sXp}, s{sXp}, s{sTmp3}"))
    def wloads(self, i, L):
        base = STG + 32 * (i % 3)
        for j in range(8):
            va = (vWe0, vWe1)[j >> 2] if i % 2 == 0 else (vWo0, vWo1)[j >> 2]
            L.append(I(f"buffer_load_dwordx4 {vr('v', base + 4*j, 4)}, v{va}, {srd(sW + 4*(j&3))}, s{sP} offen {self.o.w_mod}", tag=f"w{i}"))
        if i % 2 == 1 and i < 19:
            L.append(I(f"s_add_u32 s{sP}, s{sP}, 0x80000"))
            L.append(I(f"s_sub_u32 s{sTmp}, s{sP}, 0x500000"))
            L.append(I(f"s_cselect_b32 s{sP}, s{sP}, s{sTmp}"))
    def wf(self, i, p, hb): return (WF + 8*(p&1) + 4*hb) if i < 19 else (STG + 8*p + 4*hb)
    def perms(self, i, p):
        base = STG + 32 * (i % 3); L = []
        for hb in range(2):
            for q in range(4):
                L.append(I(f"v_perm_b32 v{self.wf(i,p,hb) + q}, v{base + 4*(2*q+1) + p}, v{base + 4*(2*q) + p}, s{(sSelLo, sSelHi)[hb]}"))
        return L
    def xreads(self, i):
        va = vXa if i % 2 == 0 else vXb
        return [I(f"ds_read_b128 {vr('a', aXF + 20*(i%2) + 4*mt, 4)}, v{va} offset:{((i>>1)%5)*10240 + mt*2048}", tag=f"xr{i}") for mt in range(5)]
    def prev_in_slot(self, u):
        c = [v for v in range(u) if self.o.slot[v] == self.o.slot[u]]
        return c[-1] if c else None
    def kv_dma(self, u):
        isv = u >= 5; kt = u - 5 if isv else u; slot = self.o.slot[u]
        s = srd(sV if isv else sK); va = vVd if isv else vKd; m = self.o.kv_mod
        base, off = (sT, slot*USZ) if slot < 3 else (sXm, 0)
        L = [I(f"s_add_u32 m0, s{base}, {off}"), I(f"s_mov_b32 s{sTmp2}, {kt*4096}")]
        for e in range(4):
            if e == 2: L.append(I(f"s_add_u32 m0, s{base}, {off + 128}"))
            L.append(I(f"buffer_load_dwordx4 v{va}, {s}, s{sTmp2} offen offset:{1024*e} {m} lds", tag=f"kv{u}", mem_w=[f"kvd{u}"]))
        return L
    def kv_reads(self, units):
        L = [I("WAITVM " + " ".join(f"kv{u}" for u in units), mem_w=[f"T{u}" for u in units], mem_r=[f"kvd{u}" for u in units])]
        ku = [u for u in units if u < 5]; vu = [u for u in units if u >= 5]
        for s in range(4):
            if not ku: break
            va = vKr
            if s: L.append(I(f"v_xor_b32 v{vTa}, {16*s}, v{vKr}")); va = vTa
            for u in ku:
                assert self.o.slot[u] < 3
                L.append(I(f"ds_read_b128 {vr('a', aK + 16*u + 4*s, 4)}, v{va} offset:{self.o.slot[u]*USZ}", tag=f"kvr{u}", mem_r=[f"T{u}", "T"]))
        for x3 in (0, 1):
            us = [u for u in vu if (self.o.slot[u] == 3) == x3]
            if not us: continue
            vb = vVr; vt = vTb
            if x3:
                L.append(I(f"s_sub_u32 s{sTmp3}, s{sXm}, s{sT}")); L.append(I(f"v_add_u32 v{vKr}, s{sTmp3}, v{vVr}")); vb = vKr; vt = vTa
            for tl in range(4):
                va = vb
                if tl: L.append(I(f"v_xor_b32 v{vt}, {32*tl}, v{vb}")); va = vt
                for u in us:
                    kt = u - 5
                    for th in range(2):
                        T = tl + 4*th
                        d = (aV0, aV1)[kt >> 1] + 4*T + 2*(kt & 1) if kt < 4 else aV2 + 2*T
                        L.append(I(f"ds_read_b64_tr_b16 {vr('a', d, 2)}, v{va} offset:{(self.o.slot[u]%3)*USZ + 128*th}", tag=f"kvr{u}", mem_r=[f"T{u}", "T"]))
        return L
    def wo_dma(self, n):
        r, q = divmod(n, 4); L = []
        L.append(I(f"s_add_u32 m0, s{sW4k}, {(n%5)*16384}"))
        L.append(I(f"s_add_u32 s{sTmp2}, s{sBlk}, {q*163840}"))
        for e in range(4):
            L.append(I(f"buffer_load_dwordx4 v{1+e}, {srd(sWo)}, s{sTmp2} offen offset:{1024*e} {self.o.wo_mod} lds", tag=f"wo{n}"))
        if q == 3 and r < 9:
            L += [I(f"s_add_u32 s{sBlk}, s{sBlk}, 128"), I(f"s_sub_u32 s{sTmp}, s{sBlk}, 1280"), I(f"s_cselect_b32 s{sBlk}, s{sBlk}, s{sTmp}")]
        return L
    def qmfma(self, i, p, hb, mt):
        c = reg(acc(2*p + hb, mt), 4)
        return I(f"v_mfma_f32_16x16x32_bf16 {c}, {vr('v', self.wf(i,p,hb), 4)}, {vr('a', aXF + 20*(i%2) + 4*mt, 4)}, {c if i else 0}")

    def qproj(self):
        P = self.P; o = self.o
        P("WAITVM x0\ns_barrier")
        P.add(self.xreads(0)); P.add(self.perms(0, 0))
        self.mstamp(0)
        M = [self.qmfma(i, p, hb, mt) for i in range(19) for p in range(4) for mt in range(5) for hb in range(2)]
        S = Slots(M)
        def seq(L, lo, hi, step=0.0):
            p = lo
            for k, ins in enumerate(L): p = S.put(max(p, int(lo + k*step)), ins, hi)
            return p
        for i in range(19):
            b = 40*i
            for p in range(4):
                ni, np_ = (i, p+1) if p < 3 else (i+1, 0)
                if np_ == 0: S.put(b + 29, I(f"WAITVM w{ni}"), b + 29)
                seq(self.perms(ni, np_), b + 10*p, b + 10*p + 3, 0.5)
            S.put(b + 39, I(f"WAITLG xr{i+1}"), b + 39)
        seq(self.perms(19, 1), 40*18 + 34, 40*18 + 38, 0.5)
        for i in range(19):
            b = 40*i; L = self.xreads(i+1); lo = b + 4
            if (i+1) % 4 == 0:
                S.put(lo, I(f"WAITVM x{(i+1)//4}"), lo); S.put(lo, I("s_barrier"), lo); lo += 1
            if i + 1 == 10: S.put(lo, I(f"v_add_u32 v{vXa}, 51200, v{vXa}"), lo)
            if i + 1 == 11: S.put(lo, I(f"v_add_u32 v{vXb}, 51200, v{vXb}"), lo)
            S.put(lo, L[0], lo)
            for k in range(1, 5): S.put(b + 4 + 5*k, L[k], b + 4 + 5*k)
        vm = []
        for i in range(2, 20):
            L = []; self.wloads(i, L)
            lo = 40*(i-3) + 30
            for k, ins in enumerate(L): vm.append((max(5, lo + 5 + 10*(min(k,7)//2) + 2*(min(k,7)&1)), 1, ins, 40*(i-1) + 10))
        for g, st in o.x_issue.items():
            L = []; self.xgroup(g, L)
            for ins in L: vm.append((40*st + (5 if st == 0 else 34), 0, ins, None))
        for items, first, stride, rd in o.bursts:
            pre = [self.prev_in_slot(u) for u in items if not isinstance(u, str)]
            pre = [u for u in pre if u is not None]
            if pre: S.put(40*first + 29, I("WAITLG " + " ".join(f"kvr{u}" for u in pre)), 40*first + 29)
            for c in range(o.ncls):
                lab = f"L_skip{self.nlab}"; self.nlab += 1
                body = []
                for it in items:
                    if isinstance(it, str): self.xgroup(int(it[1:]), body)
                    else: body += self.kv_dma(it)
                for ins in body: ins.cond = True
                g = I("s_nop 0"); g.cost = 2
                g.note = [I(f"s_cmp_lg_u32 s{sCls}, {c}"), I(f"s_cbranch_scc1 {lab}")] + body + [I(lab + ":")]
                vm.append((40*(first + c*stride) + 34, 0, g, None))
        for u in o.late_loop:
            pu = self.prev_in_slot(u)
            L = ([I(f"WAITLG kvr{pu}")] if pu is not None else []) + self.kv_dma(u)
            for ins in L: vm.append((40*17 + 34, 2, ins, None))
        L = [I("WAITVM clr"), I(f"v_lshlrev_b32 v{vXd}, 8, v0"), I(f"v_add_u32 v{vXd}, s{sW4k}, v{vXd}"), I(f"v_mov_b32 v{vTa}, 1"),
             I(f"buffer_atomic_add v{vTa}, v{vXd}, {srd(sDb)}, 0 offen sc1")]
        for ins in L: vm.append((40*17 + 28, 1, ins, None))
        vm.sort(key=lambda x: (x[0], x[1]))
        p = 0
        for lo, _, ins, hi in vm:
            p = S.put(max(p, lo), ins, None if hi is None else max(hi, p))
        for items, first, stride, rd in o.bursts:
            us = [u for u in items if not isinstance(u, str)]
            if us: seq(self.kv_reads(us), 40*rd + 34, 40*rd + 62, 1)
        for i in o.stq:
            L = []; self.stamp(L)
            for ins in L: S.put(40*i + 5, ins, 40*i + 5)
        P.add(S.emit())
        print("; qproj slot overflows:", S.over, file=sys.stderr)
        P("s_barrier")
        self.mstamp(1)

    def attention(self):
        P = self.P; o = self.o; L = []
        bias = [0]
        def A(t, **kw):
            ins = I(t, **kw) if isinstance(t, str) else t
            ins.prio += bias[0]; L.append(ins); return ins
        order = (4, 0, 1, 2, 3)
        bias[0] = 6*o.bias
        for p in (2, 3):
            for ins in self.perms(19, p): A(ins)
        bias[0] = 10*o.bias
        A(f"s_mul_i32 s{sXm}, s{sWave}, 5120"); A(f"s_add_u32 s{sXm}, s{sXm}, 81920")
        t = o.late_at
        for u in o.late_att:
            pu = self.prev_in_slot(u)
            if pu is not None: A(f"WAITLG kvr{pu}", mem_w=[f"kvd{u}"])
            for ins in self.kv_dma(u):
                A(ins)
                if ins.kind == "dma": ins.at = t; t += o.late_pace
        for x in f"""{unpark("Od", 1)}
        v_add_u32 v2, 9216, v1
        v_add_u32 v3, 18432, v1
        v_add_u32 v4, 27648, v1
        v_add_u32 v5, s{sT}, v{vL16}
        v_add_u32 v6, s{sXm}, v{vL16}
        {unpark("Wr", 7)}""".split("\n"): A(x)
        t = o.wo_at
        for n in range(5):
            for ins in self.wo_dma(n):
                A(ins)
                if ins.kind == "dma": ins.at = t; t += o.wo_pace
        for k, mt in enumerate(order):
            bias[0] = (4 - k)*o.bias
            for p in range(4):
                for hb in range(2): A(self.qmfma(19, p, hb, mt))
        for k, mt in enumerate(order):
            bias[0] = (4 - k)*o.bias
            if mt == 4:
                for kk in range(32): A(f"v_accvgpr_read_b32 v{R(4,kk)}, a{aACC4+kk}")
            for s in range(4):
                for e in range(4):
                    A(f"v_cvt_pk_bf16_f32 v{Q(mt)+4*s+e}, v{R(mt, 8*e+s)}, v{R(mt, 8*e+4+s)}")
            for s in range(4):
                for kt in range(5):
                    c = vr('v', R(mt, 4*kt), 4)
                    A(f"v_mfma_f32_16x16x32_bf16 {c}, {vr('a', aK+16*kt+4*s, 4)}, {vr('v', Q(mt)+4*s, 4)}, {c if s else 0}")
            m0, m1 = R(mt, 20), R(mt, 21)
            A(f"v_max3_f32 v{m0}, v{R(mt,0)}, v{R(mt,1)}, v{R(mt,2)}")
            A(f"v_max3_f32 v{m1}, v{R(mt,3)}, v{R(mt,4)}, v{R(mt,5)}")
            for kk in range(6, 20, 2):
                d = (m0, m1)[(kk//2) & 1]
                A(f"v_max3_f32 v{d}, v{d}, v{R(mt,kk)}, v{R(mt,kk+1)}")
            A(f"v_max_f32 v{m0}, v{m0}, v{m1}")
            for sw in ("32", "16"):
                A(f"v_mov_b32 v{m1}, v{m0}"); A(f"v_permlane{sw}_swap_b32 v{m0}, v{m1}"); A(f"v_max_f32 v{m0}, v{m0}, v{m1}")
            A(f"v_mul_f32 v{m0}, s{sC}, v{m0}")
            for kk in range(20):
                A(f"v_fma_f32 v{R(mt,kk)}, v{R(mt,kk)}, s{sC}, -v{m0}")
                A(f"v_exp_f32 v{R(mt,kk)}, v{R(mt,kk)}")
            for kk in range(10): A(f"v_cvt_pk_bf16_f32 v{Q(mt)+kk}, v{R(mt,2*kk)}, v{R(mt,2*kk+1)}")
        bias[0] = 10*o.bias
        for u, at in zip(o.late_loop + o.late_att, o.vread_at):
            RL = self.kv_reads([u]); RL[0].at = at
            for ins in RL: A(ins)
        first = True
        for k, mt in enumerate(order):
            bias[0] = (4 - k)*o.bias
            sm = vr('v', Q(mt)+12, 4)
            for u in range(3):
                n = 4 if u < 2 else 2; op = "v_mfma_f32_16x16x32_bf16" if u < 2 else "v_mfma_f32_16x16x16_bf16"
                pb = vr('v', Q(mt)+4*u, n)
                A(f"{op} {sm}, {vr('a', aONE, n)}, {pb}, {sm if u else 0}")
                for T in range(8):
                    c = vr('v', R(mt, 4*T), 4)
                    A(f"{op} {c}, {vr('a', (aV0, aV1, aV2)[u] + n*T, n)}, {pb}, {c if u else 0}")
            A(f"v_rcp_f32 v{Q(mt)+12}, v{Q(mt)+12}")
            for s in range(4):
                for kk in range(8): A(f"v_mul_f32 v{R(mt,8*s+kk)}, v{R(mt,8*s+kk)}, v{Q(mt)+12}")
                for kk in range(4): A(f"v_cvt_pk_bf16_f32 v{R(mt,8*s+kk)}, v{R(mt,8*s+2*kk)}, v{R(mt,8*s+2*kk+1)}")
                f = 4*mt + s
                A(f"ds_write_b128 v{5 if f < 15 else 6}, {vr('v', R(mt,8*s), 4)} offset:{1024*(f if f < 15 else f-15)}", mem_w=["T"] if first else [], mem_r=["T"])
                first = False
        P.add(list_schedule(L, history=P.code[-10:], verbose=True))
        self.mstamp(2)

    def check(self, thr, srd_, vaddr, vreg):
        k = self.nlab; self.nlab += 1
        T = self.tail
        T(f"L_retry{k}:\nbuffer_load_dword v{vreg}, v{vaddr}, {srd(srd_)}, 0 offen sc1\ns_sub_u32 s{sRetry}, s{sRetry}, 1\ns_cbranch_scc1 L_giveup{k}")
        T(f"s_waitcnt vmcnt(0)\nv_cmp_gt_u32 vcc, {thr}, v{vreg}\ns_nop 4\ns_cbranch_vccnz L_retry{k}\ns_branch L_back{k}")
        T(f"L_giveup{k}:\ns_mov_b32 s{sRetry}, 0\ns_waitcnt vmcnt(0)\ns_branch L_back{k}")
        return I(f"v_cmp_gt_u32 vcc, {thr}, v{vreg}"), [I(f"s_cbranch_vccnz L_retry{k}"), I(f"L_back{k}:")]

    def outproj(self):
        P = self.P; o = self.o
        OA = 128; WR = 148; PK = 164; OWN = 96; EX = 116; TMP = 124; IN = 32; ID = 80
        vPoll, vPa, vFs, vFv, vE, vM16, vM8, vZero, vS16, vS8 = range(82, 92)
        F = lambda q, mt, s: (lambda n: ('a', 4*n) if n < 64 else ('v', 192 + 4*(n-64)))(q*20 + mt*4 + s)
        P(f"""
        v_add_u32 v8, 0x10000, v7
        v_add_u32 v9, {XREG}, v{vL16}
        v_add_u32 v10, 81920, v{vL16}
        WAITVM wo0
        s_waitcnt lgkmcnt(0)
        s_barrier
        """)
        self.mstamp(3)
        def oread(q, mt, s):
            f = 4*mt + s
            a = f"v9 offset:{TSTR*q + 1024*f}" if f < 15 else f"v10 offset:{5120*q + 1024*(f-15)}"
            return I(f"ds_read_b128 {reg(F(q,mt,s),4)}, {a}", tag=f"wr{4*q+s}")
        def wread(k):
            n, s = divmod(k, 4); pos = n % 5
            return [I(f"ds_read_b64_tr_b16 {vr('v', WR + 4*(k%4) + 2*hh, 2)}, v{8 if pos == 4 else 7} offset:{(pos%4)*16384 + s*4096 + hh*2048}", tag=f"wr{k}") for hh in range(2)]
        def flush(r):
            cv = [[I(f"v_cvt_pk_bf16_f32 v{PK+2*mt+h}, v{OA+4*mt+2*h}, v{OA+4*mt+2*h+1}") for h in range(2)] for mt in range(5)]
            st = [I(f"buffer_store_dwordx4 {vr('v', PK, 4)}, v{vS16}, {srd(sIn)}, s{sPb} offen sc1", tag=f"ps{r}"),
                  I(f"buffer_store_dwordx4 {vr('v', PK+4, 4)}, v{vS16}, {srd(sIn)}, s{sPb} offen offset:1024 sc1", tag=f"ps{r}"),
                  I(f"buffer_store_dwordx2 {vr('v', PK+8, 2)}, v{vS8}, {srd(sIn)}, s{sPb} offen offset:2048 sc1", tag=f"ps{r}")]
            if r < 8: st += [I(f"s_add_u32 s{sPb}, s{sPb}, 10240"), I(f"s_sub_u32 s{sTmp3}, s{sPb}, 102400"), I(f"s_cselect_b32 s{sPb}, s{sPb}, s{sTmp3}")]
            return cv, st
        def inloads(e):
            b = IN + 16*(e % 3)
            L = [I(f"buffer_load_dwordx4 {vr('v', b, 4)}, v{vM16}, {srd(sIn)}, s{sSm} offen sc1", tag=f"in{e}"),
                 I(f"buffer_load_dwordx4 {vr('v', b+4, 4)}, v{vM16}, {srd(sIn)}, s{sSm} offen offset:1024 sc1", tag=f"in{e}"),
                 I(f"buffer_load_dwordx2 {vr('v', b+8, 2)}, v{vM8}, {srd(sIn)}, s{sSm} offen offset:2048 sc1", tag=f"in{e}"),
                 I(f"buffer_load_dwordx4 {vr('v', b+12, 4)}, v{vE}, {srd(sIn)}, s{sSe} offen sc1", tag=f"in{e}")]
            if e < 8:
                L += [I(f"s_add_u32 s{sTmp3}, s{sSm}, 921600"), I(f"s_sub_u32 s{sSm}, s{sSm}, 102400"), I(f"s_cselect_b32 s{sSm}, s{sTmp3}, s{sSm}"),
                      I(f"s_add_u32 s{sTmp3}, s{sSe}, 921600"), I(f"s_sub_u32 s{sSe}, s{sSe}, 102400"), I(f"s_cselect_b32 s{sSe}, s{sTmp3}, s{sSe}")]
            return L
        def addm(e):
            b = IN + 16*(e % 3)
            return [I(f"v_mfma_f32_16x16x16_bf16 {vr('v', OWN+4*mt, 4)}, {vr('v', ID, 2)}, {vr('v', b+2*mt, 2)}, {vr('v', OWN+4*mt, 4) if e else 0}") for mt in range(5)]
        def addx(e):
            b = IN + 16*(e % 3) + 12; L = []
            for k in range(4):
                if e == 0: L += [I(f"v_lshlrev_b32 v{EX+2*k}, 16, v{b+k}"), I(f"v_and_b32 v{EX+2*k+1}, 0xffff0000, v{b+k}")]
                else: L += [I(f"v_lshlrev_b32 v{TMP}, 16, v{b+k}"), I(f"v_and_b32 v{TMP+1}, 0xffff0000, v{b+k}"),
                            I(f"v_add_f32 v{EX+2*k}, v{EX+2*k}, v{TMP}"), I(f"v_add_f32 v{EX+2*k+1}, v{EX+2*k+1}, v{TMP+1}")]
            return L
        def flag(val): return [I(f"v_mov_b32 v{vFv}, {val}"), I(f"buffer_store_dword v{vFv}, v{vFs}, {srd(sFl)}, 0 offen sc1")]
        def poll(tag): return I(f"buffer_load_dword v{vPoll}, v{vPa}, {srd(sFl)}, 0 offen sc1", tag=tag)
        P.add(wread(0)); P.add([oread(0, mt, 0) for mt in range(5)]); P.add(wread(1)); P.add([oread(0, mt, 1) for mt in range(5)])
        for nm, v in (("Fs", vFs), ("M16", vM16), ("M8", vM8), ("S16", vS16), ("S8", vS8), ("E", vE), ("X0", 20), ("X1", 21), ("I0", ID), ("I1", ID+1),
                      ("Lw", 16), ("Lr", 17), ("O0", 18), ("O2", 19), ("Pa", vPa)): P(unpark(nm, v))
        P(f"v_mov_b32 v{vZero}, 0")
        P("WAITLG wr0")
        M = []; G = []
        addpos = {}
        for k in range(160):
            r = k // 16; q, s = (k // 4) % 4, k % 4
            if r >= 5 and k % 16 == 7: addpos[r - 5] = len(M); M += addm(r - 5)
            G.append(len(M))
            for mt in range(5):
                c = vr('v', (OA if r < 9 else OWN) + 4*mt, 4)
                M.append(I(f"v_mfma_f32_16x16x32_bf16 {c}, {vr('v', WR + 4*(k%4), 4)}, {reg(F(q,mt,s),4)}, {c if (k % 16 or r == 9) else 0}"))
        S = Slots(M)
        stores = {}
        for r in range(9):
            cv, st = flush(r); b = G[16*r + 16]
            for mt in range(5):
                for ins in cv[mt]: S.put(b - 1 + mt, ins, b - 1 + mt)
            stores[r] = st
        vm = []
        for k in range(158):
            b = G[k]; lo = b
            if (k + 2) % 4 == 0:
                n = k // 4
                w = f"WAITVM wo{n+1}" + (f" ps{n//4 - 1}" if n % 4 == 3 and n >= 7 else "")
                S.put(b, I(w), b); S.put(b, I("s_barrier"), b); lo = b + 1
                if n >= 1 and n + 4 < 40:
                    for j, ins in enumerate(self.wo_dma(n + 4)): vm.append((b + 1 + (0, 0, 2, 6, 7, 11, 11, 11, 11)[j], 1, ins))
            L = wread(k + 2)
            if k + 2 < 16: L += [oread((k+2)//4, mt, (k+2)%4) for mt in range(5)]
            if k % 16 == 0 and k: lo = b + 4
            p = lo
            for ins in L: p = S.put(p, ins, b + 6 if k % 16 == 0 and k else b + 3)
        for k in range(1, 160):
            g = G[k] - 1
            if k % 16 == 0: g -= 1
            S.put(g, I(f"WAITLG wr{k}"), g)
        def grp(L, cost=1):
            g = I("s_nop 0"); g.cost = cost; g.note = L; return g
        for r in range(1, 10):
            b = G[16*r] + 5; L = list(stores[r-1])
            if r >= 2: L += flag(r - 1)
            if r == 2: L += [I(f"buffer_load_dword v{vPoll}, v{vZero}, {srd(sDb)}, 0 offen sc1", tag="gate")]
            if r >= 3:
                cm, br = self.check(8, sDb, vZero, vPoll) if r == 3 else self.check(r - 3, sFl, vPa, vPoll)
                L = [I("WAITVM " + ("gate" if r == 3 else f"poll{r-1}")), cm] + L + [grp(br)]
                if r >= 4: L += inloads(r - 4)
                L.append(poll(f"poll{r}"))
            for ins in L: vm.append((b, 0, ins))
        b = G[144]
        cm, br = self.check(7, sFl, vPa, vPoll)
        for ins in [I("WAITVM poll9"), cm]: vm.append((b + 52, 0, ins))
        for ins in [grp(br)] + inloads(6) + [poll("poll10")]: vm.append((b + 55, 0, ins))
        for ins in [I("WAITVM ps8"), I("s_barrier")] + flag(9): vm.append((b + 62, 0, ins))
        for r in o.sto:
            L = []; self.stamp(L)
            for ins in L: S.put(G[16*r] + 6, ins, G[16*r] + 6)
        vm.sort(key=lambda x: (x[0], x[1]))
        p = 0
        for lo, c, ins in vm: p = S.put(max(p, lo), ins, max(p, lo + (10 if c else 24)))
        for e in range(5):
            S.put(addpos[e] - 2, I(f"WAITVM in{e}"), addpos[e] - 1)
            p = addpos[e]
            for ins in addx(e): p = S.put(p, ins)
        P.add(S.emit())
        print("; outproj slot overflows:", S.over, file=sys.stderr)
        self.mstamp(4)
        cm, br = self.check(8, sFl, vPa, vPoll)
        P("WAITVM poll10"); P.add([cm]); P.add(addm(5)); P.add(br); P.add(inloads(7)); P.add([poll("poll11")])
        P.add(addx(5)); P.add(addm(6)); P.add(addx(6))
        cm, br = self.check(9, sFl, vPa, vPoll)
        P("WAITVM poll11"); P.add([cm]); P.add(br); P.add(inloads(8))
        P.add(addm(7)); P.add(addx(7)); P.add(addm(8)); P.add(addx(8))
        for mt in range(5):
            P(f"v_cvt_pk_bf16_f32 v{PK+2*mt}, v{OWN+4*mt}, v{OWN+4*mt+1}\nv_cvt_pk_bf16_f32 v{PK+2*mt+1}, v{OWN+4*mt+2}, v{OWN+4*mt+3}")
            P(f"ds_write_b64 v16, {vr('v', PK+2*mt, 2)} offset:{mt*16*144}")
        for k in range(4): P(f"v_cvt_pk_bf16_f32 v{TMP+k}, v{EX+2*k}, v{EX+2*k+1}")
        P("s_waitcnt lgkmcnt(0)\ns_barrier")
        for i in range(3): P(f"ds_read_b128 {vr('v', IN+4*i, 4)}, v17 offset:{i*8*144}")
        P(f"buffer_store_dwordx2 {vr('v', TMP, 2)}, v20, {srd(sOut)}, s{sOe} offen {o.out_mod}")
        P(f"buffer_store_dwordx2 {vr('v', TMP+2, 2)}, v21, {srd(sOut)}, s{sOe} offen {o.out_mod}")
        P(f"buffer_store_dwordx4 {vr('v', IN, 4)}, v18, {srd(sOut)}, s{sOm} offen {o.out_mod}")
        P(f"s_add_u32 s{sTmp}, s{sOm}, 20480")
        P(f"buffer_store_dwordx4 {vr('v', IN+4, 4)}, v18, {srd(sOut)}, s{sTmp} offen {o.out_mod}")
        P(f"buffer_store_dwordx4 {vr('v', IN+8, 4)}, v19, {srd(sOut)}, s{sOm} offen {o.out_mod}")

    def finish(self):
        P = self.P
        if self.o.stamps:
            P("s_waitcnt vmcnt(0)"); self.stamp()
            P("s_memrealtime s[72:73]\ns_waitcnt lgkmcnt(0)")
            sMisc = sX; self.mk(P.code, sMisc, pWs, 0x8000000, 0x8000000)
            P(f"s_lshl_b32 s{sTmp}, s2, 2\ns_add_u32 s{sTmp}, s{sTmp}, s{sWave}\ns_lshl_b32 s{sTmp}, s{sTmp}, 7\nv_mov_b32 v1, 0\ns_mov_b64 exec, 1")
            src = [68, 72, 70] + STAMPS[:self.nst]
            for k, s in enumerate(src):
                P(f"v_mov_b32 v2, s{s}\nbuffer_store_dword v2, v1, {srd(sMisc)}, s{sTmp} offen offset:{4*k}")
            P(f"v_mov_b32 v2, s{sRetry}\nbuffer_store_dword v2, v1, {srd(sMisc)}, s{sTmp} offen offset:124")
        if self.o.probe is not None:
            P("s_waitcnt vmcnt(0)"); self.stamp()
            P("s_waitcnt lgkmcnt(0)\ns_sub_u32 s70, s70, s68\ns_mul_i32 s70, s70, 4\ns_add_u32 s70, s70, 10000")
            P("L_spin:\ns_memrealtime s[72:73]\ns_waitcnt lgkmcnt(0)\ns_sub_u32 s72, s72, s68\ns_cmp_lt_u32 s72, s70\ns_cbranch_scc1 L_spin")
        P("L_end:\ns_endpgm")

    def build(self):
        self.prologue(); self.qproj(); self.attention(); self.outproj(); self.finish()
        wl = []; nl = []
        code, _, _ = insert_waits(self.P.code, log=wl)
        code = insert_nops(code, log=nl)
        print(f"; auto waits {len(wl)}, auto nops {len(nl)} ({sum(n for n,_ in nl)} states)", file=sys.stderr)
        self.wl, self.nl = wl, nl
        Z = Prog(); Z.code = code + self.tail.code
        return Z.text()

def desc(name, vgpr, accum):
    return f""".amdhsa_kernel {name}
  .amdhsa_next_free_vgpr {vgpr}
  .amdhsa_next_free_sgpr 102
  .amdhsa_accum_offset {accum}
  .amdhsa_group_segment_fixed_size 0
  .amdhsa_kernarg_size 104
  .amdhsa_user_sgpr_count 2
  .amdhsa_user_sgpr_kernarg_segment_ptr 1
  .amdhsa_system_sgpr_workgroup_id_x 1
  .amdhsa_float_denorm_mode_32 3
.end_amdhsa_kernel
"""
def full(o):
    g = Gen(o); body = g.build()
    main = NAME + "_kernel"
    t = f"; @launch grid=(256,1,1) block=(256,1,1) lds={LDS}\n"
    t += '.amdgcn_target "amdgcn-amd-amdhsa--gfx950"\n.text\n'
    t += f".globl {main}\n.p2align 8\n.type {main},@function\n{main}:\n" + body
    t += '.section .rodata,"a"\n.p2align 6\n' + desc(main, 512, 256)
    return t, g

if __name__ == "__main__":
    o = Opt()
    out = sys.argv[1]
    for a in sys.argv[2:]:
        k, v = a.split("=", 1); assert hasattr(o, k), k; setattr(o, k, eval(v))
    t, g = full(o)
    open(out, "w").write(t)
    if "-v" in out:
        for w in g.wl: print(w)
        for w in g.nl: print(w)
```

```python
import re

REG_RE = re.compile(r'(?<![\w.])([vas])(?:\[(\d+):(\d+)\]|(\d+))(?![\w])')

def regs_of(tok):
    out = []
    for m in REG_RE.finditer(tok):
        k = m.group(1)
        if m.group(2) is not None:
            out += [(k, i) for i in range(int(m.group(2)), int(m.group(3)) + 1)]
        else:
            out.append((k, int(m.group(4))))
    for sp in ("vcc", "exec", "m0"):
        if re.search(r'(?<![\w])' + sp + r'(?![\w])', tok):
            out.append(('x', sp))
    return out

TRANS = ("v_exp_f32", "v_rcp_f32", "v_log_f32", "v_rsq_f32", "v_sqrt_f32")
SCC_W = ("s_add_", "s_addc_", "s_sub_", "s_subb_", "s_and_", "s_or_", "s_xor_", "s_lshl_", "s_lshr_", "s_cmp", "s_bitcmp",
         "s_min_", "s_max_", "s_andn2_", "s_ashr_", "s_addk_", "s_bfe_", "s_not_", "s_lshl1_", "s_lshl2_", "s_lshl3_", "s_lshl4_", "s_bcnt")
SCC_R = ("s_addc_", "s_subb_", "s_cselect_", "s_cbranch_scc", "s_cmov")

class I:
    __slots__ = ("text", "op", "kind", "defs", "uses", "tag", "mem_r", "mem_w", "srcC", "prio", "cost", "note", "idx", "cond", "at")
    def __init__(self, text, tag=None, mem_r=(), mem_w=(), note=None):
        self.text = text.strip(); self.tag = tag; self.note = note
        self.mem_r = set(mem_r); self.mem_w = set(mem_w); self.srcC = set(); self.prio = 0; self.cond = False; self.at = 0
        t = self.text
        if t.endswith(":") or t.startswith(".") or t.startswith(";"):
            self.op = t; self.kind = "label" if t.endswith(":") else "dir"; self.defs = set(); self.uses = set(); self.cost = 0; return
        sp = t.split(None, 1); op = sp[0]; self.op = op
        ops = [x.strip() for x in sp[1].split(",")] if len(sp) > 1 else []
        R = [regs_of(x) for x in ops]
        flat = lambda L: set(r for x in L for r in x)
        defs, uses = set(), set(); cost = 1
        if op.startswith("v_mfma"):
            kind = "mfma"; defs = set(R[0]); uses = flat(R[1:]); self.srcC = set(R[3]); cost = 2
        elif op.startswith("v_permlane") and "swap" in op:
            kind = "permlane"; defs = flat(R[:2]); uses = flat(R[:2])
        elif op.startswith("v_cmp"):
            kind = "valu"; defs = set(R[0]); uses = flat(R[1:])
        elif op.startswith("v_readfirstlane") or op.startswith("v_readlane"):
            kind = "readlane"; defs = set(R[0]); uses = flat(R[1:])
        elif op.startswith("v_"):
            kind = "trans" if op.startswith(TRANS) else "valu"
            if kind == "trans": cost = 2
            defs = set(R[0]); uses = flat(R[1:])
            if op.startswith(("v_fmac", "v_dot2c", "v_writelane")): uses |= defs
            if "_co_" in op: defs |= set(R[1]); uses = flat(R[2:])
        elif op.startswith("buffer_load") or op.startswith("global_load"):
            cost = 2
            if re.search(r'\blds\b', t):
                kind = "dma"; uses = flat(R) | {('x', 'm0')}
            else:
                kind = "vload"; defs = set(R[0]); uses = flat(R[1:])
        elif op.startswith("buffer_store") or op.startswith("global_store"):
            kind = "vstore"; uses = flat(R); cost = 2
        elif op.startswith("buffer_atomic") or op.startswith("global_atomic"):
            kind = "vstore"; uses = flat(R); cost = 2
            if re.search(r'\bsc0\b', t): kind = "vload"; defs = set(R[0])
        elif op.startswith("ds_read"):
            kind = "dsread"; defs = set(R[0]); uses = flat(R[1:])
        elif op.startswith("ds_write"):
            kind = "dswrite"; uses = flat(R)
        elif op.startswith("s_load") or op.startswith("s_memtime") or op.startswith("s_memrealtime"):
            kind = "smem"; defs = set(R[0]); uses = flat(R[1:])
        elif op == "s_waitcnt": kind = "wait"
        elif op == "s_nop": kind = "nop"
        elif op == "s_barrier": kind = "barrier"
        elif op.startswith("s_cbranch") or op in ("s_branch", "s_endpgm", "s_setpc_b64", "s_swappc_b64"):
            kind = "branch"; uses = flat(R)
            if "vcc" in op: uses.add(('x', 'vcc'))
            if "exec" in op: uses.add(('x', 'exec'))
        elif op.startswith("WAIT"):
            kind = "pwait"
            if op == "WAITX": cost = 0
        elif op.startswith("s_"):
            kind = "salu"
            if op.startswith(("s_cmp", "s_bitcmp", "s_setprio", "s_sleep")): uses = flat(R)
            else:
                defs = set(R[0]); uses = flat(R[1:])
                if op.startswith(("s_addk", "s_mulk", "s_cmov")): uses |= defs
                if "saveexec" in op: defs.add(('x', 'exec')); uses.add(('x', 'exec'))
        else:
            raise ValueError("unknown instr: " + t)
        if op.startswith(SCC_W) or "saveexec" in op: defs.add(('x', 'scc'))
        if op.startswith(SCC_R): uses.add(('x', 'scc'))
        self.kind = kind; self.defs = defs; self.uses = uses; self.cost = cost
    def __repr__(self): return self.text

VM = ("vload", "vstore", "dma")
LG = ("dsread", "dswrite", "smem")
VALU = ("valu", "trans", "permlane", "readlane")

def parse_wait(t):
    vm = re.search(r'vmcnt\((\d+)\)', t); lg = re.search(r'lgkmcnt\((\d+)\)', t)
    return (int(vm.group(1)) if vm else None, int(lg.group(1)) if lg else None)

def insert_waits(code, vmq=None, lgq=None, log=None):
    Q = {"vm": list(vmq or []), "lg": list(lgq or [])}; out = []
    total = {}; seen = {}
    for ins in code:
        if ins.tag: total[ins.tag] = total.get(ins.tag, 0) + 1
    def younger(q, i): return sum(1 for o in q[i+1:] if not o.cond)
    def retire(k, n):
        q = Q[k]
        if k == "lg" and n > 0 and any(o.kind == "smem" for o in q): return
        cnt = 0; cut = 0
        if n == 0: cut = len(q)
        else:
            for i in range(len(q) - 1, -1, -1):
                if not q[i].cond:
                    cnt += 1
                    if cnt == n: cut = i; break
        Q[k] = q[cut:]
    def do_wait(vm, lg, auto, ins):
        parts = []
        if vm is not None:
            vm = min(vm, 63); parts.append(f"vmcnt({vm})")
            if not ins.cond: retire("vm", vm)
        if lg is not None:
            if any(q.kind == "smem" for q in Q["lg"]): lg = 0
            lg = min(lg, 15); parts.append(f"lgkmcnt({lg})")
            if not ins.cond: retire("lg", lg)
        w = I("s_waitcnt " + " ".join(parts)); w.cond = ins.cond; out.append(w)
        if auto and log is not None: log.append((w.text, ins.text))
    for ins in code:
        if ins.kind == "pwait":
            sp = ins.text.split(); tags = set(sp[1:])
            for tg in tags: assert total.get(tg, 0) > 0 and seen.get(tg, 0) == total[tg], f"wait on tag {tg} before all its ops were issued"
            if sp[0] == "WAITX": continue
            q = Q["vm"] if sp[0] == "WAITVM" else Q["lg"]
            pos = [i for i, o in enumerate(q) if o.tag in tags]
            if pos:
                n = younger(q, max(pos))
                do_wait(n if sp[0] == "WAITVM" else None, n if sp[0] == "WAITLG" else None, False, ins)
            continue
        if ins.kind == "wait":
            vm, lg = parse_wait(ins.text)
            if not ins.cond:
                if vm is not None: retire("vm", vm)
                if lg is not None: retire("lg", lg)
            out.append(ins); continue
        touch = ins.uses | ins.defs
        nv = nl = None
        for i, o in enumerate(Q["vm"]):
            if o.defs & touch and not (ins.kind == "vload" and not (o.defs & ins.uses)):
                nv = younger(Q["vm"], i)
        for i, o in enumerate(Q["lg"]):
            if o.defs & touch and not (ins.kind == "dsread" and o.kind == "dsread" and not (o.defs & ins.uses)):
                nl = younger(Q["lg"], i)
        if nv is not None or nl is not None: do_wait(nv, nl, True, ins)
        out.append(ins)
        if ins.tag: seen[ins.tag] = seen.get(ins.tag, 0) + 1
        if ins.kind in VM:
            Q["vm"].append(ins)
            assert sum(1 for o in Q["vm"] if not o.cond) <= 50, "vmcnt overflow at " + ins.text
        if ins.kind in LG: Q["lg"].append(ins)
    return out, Q["vm"], Q["lg"]

def need_states(p, c):
    n = 0
    vdefs = {r for r in p.defs if r[0] in "va"}
    sdefs = {r for r in p.defs if r[0] == "s" or r == ('x', 'vcc')}
    if p.kind in VALU:
        if c.kind == "mfma" and vdefs & c.uses: n = max(n, 2)
        if c.kind == "permlane" and vdefs & c.uses: n = max(n, 2)
        if c.kind == "readlane" and vdefs & c.uses: n = max(n, 1)
        if "dpp" in c.text and vdefs & c.uses: n = max(n, 2)
        if p.kind == "trans" and c.kind in VALU + ("vstore", "dswrite") and vdefs & c.uses: n = max(n, 1)
        if sdefs:
            if c.kind in VM and sdefs & c.uses: n = max(n, 5)
            if c.kind in VALU and sdefs & c.uses: n = max(n, 4 if c.kind == "readlane" else 2)
            if c.kind in ("salu", "branch", "smem") and sdefs & c.uses: n = max(n, 1)
            if c.kind == "branch" and ('x', 'vcc') in (p.defs & c.uses): n = max(n, 2)
    if p.kind == "mfma":
        if c.kind == "mfma":
            ab = c.uses - c.srcC
            if p.defs & ab: n = max(n, 8)
            if p.defs & c.srcC and (p.defs != c.srcC or p.op != c.op): n = max(n, 6)
            if p.defs & c.defs and not (p.defs & c.srcC): n = max(n, 0)
        elif c.kind in VALU + VM + ("dsread", "dswrite"):
            if p.defs & (c.uses | c.defs): n = max(n, 8)
            if c.kind in VALU and p.srcC & c.defs: n = max(n, 3)
    if p.kind == "salu" and ('x', 'm0') in p.defs and c.kind == "dma": n = max(n, 1)
    if p.kind == "salu" and ('x', 'exec') in p.defs and c.kind in ("permlane",): n = max(n, 1)
    if p.kind == "vstore" and ("x4" in p.op or "x3" in p.op):
        data = {r for r in p.uses if r[0] in "va"}
        if data & c.defs: n = max(n, 2)
    return n

def states_of(ins):
    if ins.kind in ("label", "dir"): return 0
    if ins.kind == "nop": return int(ins.text.split()[1]) + 1
    return 1

def insert_nops(code, log=None, history=None):
    out = list(history or []); base = len(out)
    for ins in code:
        if ins.kind not in ("label", "dir", "nop", "wait"):
            dist = 0; need = 0
            for p in reversed(out):
                k = need_states(p, ins)
                if k - dist > need: need = k - dist
                if ins.cond or not p.cond: dist += states_of(p)
                if dist >= 8: break
            if need > 0:
                nop = I(f"s_nop {need-1}"); nop.cond = ins.cond; out.append(nop)
                if log is not None: log.append((need, ins.text))
        out.append(ins)
    return out[base:]

class Prog:
    def __init__(self): self.code = []
    def __call__(self, text, **kw):
        for line in text.split("\n"):
            line = line.split(";")[0].strip() if not line.strip().startswith(";") else line.strip()
            if line: self.code.append(I(line, **kw))
    def add(self, L): self.code += L
    def text(self): return "\n".join(("" if i.kind in ("label", "dir") else "    ") + i.text for i in self.code) + "\n"

def vr(k, a, n=1): return f"{k}{a}" if n == 1 else f"{k}[{a}:{a+n-1}]"

class Slots:
    def __init__(self, mfmas, cap=2):
        self.m = mfmas; self.n = len(mfmas); self.cap = [cap] * self.n; self.ds = [0] * self.n
        self.g = [[] for _ in mfmas]; self.over = 0
    def put(self, pos, ins, hi=None):
        if isinstance(ins, str): ins = I(ins)
        hi = self.n - 1 if hi is None else min(hi, self.n - 1)
        pos = max(0, min(pos, hi)); isds = ins.kind in ("dsread", "dswrite")
        p = pos
        while p <= hi and (self.cap[p] < ins.cost or (isds and self.ds[p])): p += 1
        if p > hi:
            p = max(range(pos, hi + 1), key=lambda q: (self.cap[q] - (2 if isds and self.ds[q] else 0), q)); self.over += 1
        self.cap[p] -= ins.cost; self.ds[p] += isds; self.g[p].append(ins); return p
    def put_group(self, pos, L, cost, hi=None):
        g = I("s_nop 0"); g.cost = cost; g.note = L
        return self.put(pos, g, hi)
    def emit(self):
        out = []
        for m, g in zip(self.m, self.g):
            out.append(m)
            for x in g:
                if isinstance(x.note, list): out += x.note
                else: out.append(x)
        return out

def dep_latency(p, c, raw):
    base = 4 * p.cost
    if not raw: return base
    if p.kind == "mfma":
        if c.kind == "mfma" and p.op == c.op and p.defs == c.srcC and not (p.defs & (c.uses - c.srcC)): return 16
        return 32
    if p.kind == "dsread": return 110
    if p.kind == "vload": return 600
    if p.kind == "trans": return 12
    return base

def list_schedule(code, history=(), verbose=False, keep_order=("vm",)):
    n = len(code)
    preds = [dict() for _ in range(n)]; succs = [dict() for _ in range(n)]
    last_w = {}; readers = {}
    def edge(a, b, lat):
        if a == b: return
        if preds[b].get(a, -1) < lat: preds[b][a] = lat; succs[a][b] = lat
    last_vm = last_ds = last_sync = None
    for i, ins in enumerate(code):
        uses = set(ins.uses) | {('m', t) for t in ins.mem_r}
        defs = set(ins.defs) | {('m', t) for t in ins.mem_w}
        for r in uses:
            if r in last_w: edge(last_w[r], i, dep_latency(code[last_w[r]], ins, r[0] != 'm'))
        for r in defs:
            if r in last_w: edge(last_w[r], i, dep_latency(code[last_w[r]], ins, code[last_w[r]].kind in ("mfma", "dsread", "vload") and r[0] != 'm'))
            for q in readers.get(r, ()): edge(q, i, dep_latency(code[q], ins, False))
        for r in uses: readers.setdefault(r, []).append(i)
        for r in defs: last_w[r] = i; readers[r] = []
        if ins.kind in VM:
            if last_vm is not None: edge(last_vm, i, 8)
            last_vm = i
        if ins.kind in ("dsread", "dswrite") and "ds" in keep_order:
            if last_ds is not None: edge(last_ds, i, 4)
            last_ds = i
    prio = [0] * n
    for i in reversed(range(n)):
        prio[i] = max([lat + prio[s] for s, lat in succs[i].items()] + [4 * code[i].cost])
    prio = [prio[i] + code[i].prio for i in range(n)]
    out = list(history); base = len(out)
    npred = [len(p) for p in preds]; ready_t = [c.at for c in code]
    cand = [i for i in range(n) if npred[i] == 0]
    t = 0; pipe = 0; lastds = -100; stall = 0
    def states_ok(ins):
        dist = 0
        for p in reversed(out):
            if need_states(p, ins) > dist: return False
            dist += states_of(p)
            if dist >= 8: break
        return True
    while cand:
        ok = [i for i in cand if ready_t[i] <= t and states_ok(code[i])]
        mf = [i for i in ok if code[i].kind == "mfma"]
        other = [i for i in ok if code[i].kind != "mfma" and not (code[i].kind in ("dsread", "dswrite") and t - lastds < 12)]
        pick = None
        if mf and pipe <= t: pick = max(mf, key=lambda i: (prio[i], -i))
        elif other:
            room = (pipe - t) if mf else 99
            fit = [i for i in other if 4 * code[i].cost <= room]
            pick = max(fit or other, key=lambda i: (prio[i], -i))
        if pick is None:
            blocked_states = [i for i in cand if ready_t[i] <= t + 4 and not states_ok(code[i])]
            if blocked_states: out.append(I("s_nop 0"))
            t += 4; stall += 4
            continue
        ins = code[pick]; out.append(ins); cand.remove(pick)
        if ins.kind == "mfma": pipe = t + 16
        if ins.kind in ("dsread", "dswrite"): lastds = t
        for s, lat in succs[pick].items():
            ready_t[s] = max(ready_t[s], t + lat); npred[s] -= 1
            if npred[s] == 0: cand.append(s)
        t += 4 * ins.cost
    if verbose:
        import sys
        print(f"; list_schedule: {n} instrs, est {t} cycles, idle {stall}", file=sys.stderr)
    return out[base:]


def slot_cost(ins):
    if isinstance(ins.note, list): return ins.cost
    k = ins.kind
    if k in ("label", "dir"): return 0
    if k == "pwait": return 0 if ins.op == "WAITX" else 1
    if k == "dswrite": return 5 if "b128" in ins.op else 3
    if k in ("trans", "permlane") or k in VM: return 2
    if k == "branch": return 3
    if k == "barrier": return 2
    if k == "nop": return int(ins.text.split()[1]) + 1
    return 1
def needs_slot2(ins):
    if isinstance(ins.note, list): ins = ins.note[0]
    return ins.kind in VALU + ("dsread", "dswrite")
def gap_time(L):
    t = 1; nds = 0
    for x in L:
        if needs_slot2(x) and t < 2: t = 2
        if x.kind == "dsread":
            nds += 1
            if nds > 1: t += 1
        t += slot_cost(x)
    return t
def flat(x): return x.note if isinstance(x.note, list) else [x]
SYNC = ("pwait", "barrier", "branch", "wait", "label")
MEMK = VM + ("dsread", "dswrite")
def may_pass(a, b):
    for x in flat(a):
        for y in flat(b):
            if x.defs & (y.uses | y.defs) or x.uses & y.defs: return False
            if x.kind in SYNC and y.kind in MEMK + SYNC: return False
            if y.kind in SYNC and x.kind in MEMK + SYNC: return False
            if x.kind in VM and y.kind in VM: return False
    return True
def group(L, cost=None):
    L = [I(x) if isinstance(x, str) else x for x in L]
    g = I("s_nop 0"); g.note = L; g.cost = sum(slot_cost(x) for x in L) if cost is None else cost; g.kind = "group"
    return g

class Gaps:
    def __init__(self, mfmas):
        self.m = mfmas; self.n = len(mfmas); self.g = [[] for _ in mfmas]; self.sid = [[] for _ in mfmas]
    def options(self, p, ins, stream):
        g = self.g[p]; opts = [len(g)]
        k = len(g)
        while k > 0 and (stream is None or self.sid[p][k-1] != stream) and may_pass(ins, g[k-1]):
            k -= 1; opts.append(k)
        best = min(opts, key=lambda k: (gap_time(g[:k] + [ins] + g[k:]), -k))
        return best, gap_time(g[:best] + [ins] + g[best:])
    def put(self, lo, ins, hi=None, stream=None):
        if isinstance(ins, str): ins = I(ins)
        hi = self.n - 1 if hi is None else min(hi, self.n - 1)
        lo = max(0, min(lo, hi)); cand = []
        for p in range(lo, hi + 1):
            k, t = self.options(p, ins, stream)
            extra = max(t, 4) - max(gap_time(self.g[p]), 4)
            if extra == 0: break
            cand.append((extra, p, k))
        else:
            extra, p, k = min(cand)
        self.g[p].insert(k, ins); self.sid[p].insert(k, stream)
        return p
    def seq(self, L, lo, hi=None, step=0.0, stream=None, win=None):
        stream = stream or object(); p = lo
        for k, ins in enumerate(L):
            q = max(p, int(lo + k*step))
            h = hi if win is None else (q + win if hi is None else min(hi, q + win))
            p = self.put(q, ins, None if h is None else max(h, p), stream)
        return p
    def over(self): return sum(max(0, gap_time(g) - 4) for g in self.g)
    def emit(self):
        out = []
        for m, g in zip(self.m, self.g):
            out.append(m)
            for x in g: out += flat(x)
        return out

def list_schedule2(code, history=(), verbose=False):
    n = len(code)
    preds = [dict() for _ in range(n)]; succs = [dict() for _ in range(n)]
    last_w = {}; readers = {}
    cost = [4 * (1 if c.kind == "mfma" else slot_cost(c)) for c in code]
    def lat(a, b, raw):
        p, c = code[a], code[b]
        if not raw: return cost[a]
        if p.kind == "mfma":
            if c.kind == "mfma" and p.op == c.op and p.defs == c.srcC and not (p.defs & (c.uses - c.srcC)): return 16
            return 32
        if p.kind == "dsread": return 120
        if p.kind == "trans": return 12
        return cost[a]
    def edge(a, b, l):
        if a != b and preds[b].get(a, -1) < l: preds[b][a] = l; succs[a][b] = l
    last_vm = None
    for i, ins in enumerate(code):
        uses = set(ins.uses) | {('m', t) for t in ins.mem_r}
        defs = set(ins.defs) | {('m', t) for t in ins.mem_w}
        for r in uses:
            if r in last_w: edge(last_w[r], i, lat(last_w[r], i, r[0] != 'm'))
        for r in defs:
            if r in last_w: edge(last_w[r], i, lat(last_w[r], i, code[last_w[r]].kind in ("mfma", "dsread") and r[0] != 'm'))
            for q in readers.get(r, ()): edge(q, i, lat(q, i, False))
        for r in uses: readers.setdefault(r, []).append(i)
        for r in defs: last_w[r] = i; readers[r] = []
        if ins.kind in VM:
            if last_vm is not None: edge(last_vm, i, 8)
            last_vm = i
    prio = [0] * n
    for i in reversed(range(n)):
        prio[i] = max([l + prio[s] for s, l in succs[i].items()] + [cost[i]])
    prio = [prio[i] + code[i].prio for i in range(n)]
    out = list(history); base = len(out)
    npred = [len(p) for p in preds]; ready_t = [c.at for c in code]
    cand = [i for i in range(n) if npred[i] == 0]
    t = 0; lastm = -100; lastds = -100; stall = 0; times = []
    ispk = [c.op.startswith("v_pk_") for c in code]
    def states_ok(ins):
        dist = 0
        for p in reversed(out):
            if need_states(p, ins) > dist: return False
            if p.kind != "pwait": dist += states_of(p)
            if dist >= 8: break
        return True
    while cand:
        ok = [i for i in cand if ready_t[i] <= t and states_ok(code[i])]
        mf = [i for i in ok if code[i].kind == "mfma"]
        pk = [i for i in ok if ispk[i]]
        other = [i for i in ok if code[i].kind != "mfma" and not ispk[i]
                 and not (needs_slot2(code[i]) and t < lastm + 8) and not (code[i].kind == "dsread" and t - lastds < 8)]
        key = lambda i: (prio[i], -i)
        pick = None
        want_pk = pk and (not mf or max(prio[i] for i in pk) > max(prio[i] for i in mf))
        if want_pk and t >= lastm + 28: pick = max(pk, key=key)
        elif mf and t >= lastm + 16 and not want_pk: pick = max(mf, key=key)
        elif other:
            room = (lastm + 16 - t) if (mf and not want_pk) else 999
            fit = [i for i in other if cost[i] <= room]
            pick = max(fit or other, key=key)
            if not fit and room <= 4 and cost[pick] > 8: pick = None
        if pick is None:
            blocked = [i for i in cand if ready_t[i] <= t + 4 and not states_ok(code[i])]
            if blocked: out.append(I("s_nop 0"))
            if t >= lastm + 8: stall += 4
            t += 4
            continue
        ins = code[pick]; out.append(ins); cand.remove(pick); ins.idx = t
        if ins.kind == "mfma": lastm = t
        if ins.kind == "dsread": lastds = t
        for s, l in succs[pick].items():
            ready_t[s] = max(ready_t[s], t + l); npred[s] -= 1
            if npred[s] == 0: cand.append(s)
        t += cost[pick]
    if verbose:
        import sys
        print(f"; list_schedule2: {n} instrs, est {t} cycles, idle {stall}", file=sys.stderr)
    return out[base:]
```

```python
import sys, math
from asmlib import *

NAME = "concat_heads__gqa_block_cached__gqa_block_cached__near_ridge"
LDS = 163840
sX, sW, sK, sV, sWo, sWs, sOut, sMisc = 4, 8, 24, 28, 32, 36, 40, 44
sWave = 3
sB, sJ, sBr, sP, sSelLo, sSelHi, sT, sTmp, sXp, sXm, sC, sBlk, sW4k, sTmp2, sFlip, sPb, sTmp3 = range(74, 91)
STAMP0 = 48
def srd(b): return f"s[{b}:{b+3}]"
vWe0, vWe1, vWo0, vWo1, vXa, vXb, vXd, vKd, vVd, vKr, vVr, vTa, vTb, vL16, vL8 = range(1, 16)
WF = 16; STG = 32; ACC = 128
aACC4 = 0; aXF = 32; aK = 72; aV0 = 152; aV1 = 184; aV2 = 216; aONE = 232
XREG = 102400; TSTR = 15360; USZ = 4224

class Opt:
    stamps = False
    kv_mod = "nt"; w_mod = ""; x_mod = ""; wo_mod = ""; part_mod = "sc1"
    kv_issue = {0: 2, 1: 2, 2: 2, 3: 7, 4: 7, 5: 7, 6: 12, 7: 12, 8: 12, 9: 17}
    kv_read = {0: 6, 1: 6, 2: 6, 3: 11, 4: 11, 5: 11, 6: 16, 7: 16, 8: 16, 9: 20}
    x_issue = {0: -1, 1: -1, 2: -1, 3: 1, 4: 5}
    dump = None
    stq = ()
    sto = ()
    stm = (0,1,2,3,4,5)
    touch = 0
    probe = None
    latprobe = None
    empty = 0

def acc(t, mt): return ("v", ACC + 32*mt + 4*t) if mt < 4 else ("a", aACC4 + 4*t)
def reg(kr, n): return vr(kr[0], kr[1], n)

class Gen:
    def __init__(self, o):
        self.o = o; self.P = Prog(); self.nst = 0
    def mstamp(self, k):
        if k in self.o.stm or self.o.probe is not None: self.stamp()
    def stamp(self, L=None):
        if self.o.probe is not None:
            if self.nst == self.o.probe: self.P("s_memrealtime s[94:95]")
            self.nst += 1
        if not self.o.stamps: return
        i = self.nst; self.nst += 1
        ins = I(f"{'s_memtime' if self.o.stamps == 'cyc' else 's_memrealtime'} s[{STAMP0+2*i}:{STAMP0+2*i+1}]")
        (self.P.code if L is None else L).append(ins)

    def prologue(self):
        P = self.P; o = self.o
        P("s_cmp_ge_u32 s2, 256\ns_cbranch_scc1 L_end")
        if o.stamps: P("s_memrealtime s[92:93]\n" + ("s_memtime" if o.stamps == "cyc" else "s_memrealtime") + " s[94:95]")
        if o.probe is not None: P("s_memrealtime s[92:93]\ns_memrealtime s[94:95]")
        P("s_load_dwordx16 s[48:63], s[0:1], 0\ns_load_dwordx8 s[64:71], s[0:1], 64\ns_load_dwordx2 s[72:73], s[0:1], 96")
        P(f"v_lshrrev_b32 v1, 6, v0\nv_and_b32 v0, 63, v0\nv_readfirstlane_b32 s{sWave}, v1")
        P(f"""
        s_lshr_b32 s{sB}, s2, 4
        s_bfe_u32 s{sBr}, s2, 0x10002
        s_and_b32 s{sJ}, s2, 3
        s_lshl_b32 s{sJ}, s{sJ}, 1
        s_bfe_u32 s{sTmp}, s2, 0x10003
        s_add_u32 s{sJ}, s{sJ}, s{sTmp}
        s_mul_i32 s{sTmp}, s{sTmp}, 5
        s_cmp_ge_u32 s{sB}, 10
        s_cselect_b32 s{sFlip}, 1, 0
        s_cselect_b32 s{sTmp2}, 10, 0
        s_sub_u32 s{sPb}, s{sB}, s{sTmp2}
        s_add_u32 s{sP}, s{sPb}, s{sTmp}
        s_sub_u32 s{sTmp2}, s{sP}, 10
        s_cselect_b32 s{sP}, s{sP}, s{sTmp2}
        s_and_b32 s{sTmp}, s{sWave}, 1
        s_add_u32 s{sXp}, s{sP}, s{sTmp}
        s_sub_u32 s{sTmp2}, s{sXp}, 10
        s_cselect_b32 s{sXp}, s{sXp}, s{sTmp2}
        s_lshl_b32 s{sXp}, s{sXp}, 7
        s_lshl_b32 s{sP}, s{sP}, 19
        s_mul_i32 s{sXm}, s{sTmp}, 10240
        s_lshr_b32 s{sTmp}, s{sWave}, 1
        s_mul_i32 s{sTmp2}, s{sTmp}, 5120
        s_add_u32 s{sXm}, s{sXm}, s{sTmp2}
        s_mul_i32 s{sTmp3}, s{sTmp}, 51200
        s_mul_i32 s{sT}, s{sWave}, {TSTR}
        s_add_u32 s{sT}, s{sT}, {XREG}
        s_lshl_b32 s{sW4k}, s{sWave}, 12
        """)
        P(f"""
        v_lshrrev_b32 v16, 4, v0
        v_and_b32 v17, 15, v0
        v_lshrrev_b32 v18, 3, v0
        v_and_b32 v19, 7, v0
        v_and_b32 v20, 6, v18
        v_xor_b32 v20, v19, v20
        v_mul_u32_u24 v21, 1280, v18
        v_lshl_add_u32 v{vXd}, v20, 4, v21
        v_add_u32 v{vXd}, s{sTmp3}, v{vXd}
        v_lshlrev_b32 v21, 16, v16
        v_lshl_add_u32 v21, v17, 4, v21
        s_lshl_b32 s{sTmp}, s{sFlip}, 18
        s_xor_b32 s{sTmp2}, s{sTmp}, 0x40000
        v_add_u32 v{vWe0}, s{sTmp}, v21
        v_add_u32 v{vWo0}, s{sTmp2}, v21
        v_add_u32 v{vWe1}, 0x8000, v{vWe0}
        v_add_u32 v{vWo1}, 0x8000, v{vWo0}
        """)
        if o.touch:
            P(f"""
            s_getpc_b64 s[44:45]
            s_mov_b32 s46, {o.touch}
            s_mov_b32 s47, 0x20000
            s_lshr_b32 s{sTmp}, s2, 3
            s_lshl_b32 s{sTmp}, s{sTmp}, 2
            s_add_u32 s{sTmp}, s{sTmp}, s{sWave}
            s_lshl_b32 s{sTmp}, s{sTmp}, 9
            v_lshlrev_b32 v22, 7, v0
            s_mov_b64 exec, 15
            buffer_load_dword v23, v22, s[44:47], s{sTmp} offen
            s_mov_b64 exec, -1
            """)
        P("s_waitcnt lgkmcnt(0)")
        if o.latprobe is not None:
            p, mode, off = o.latprobe
            P(f"s_add_u32 s44, s{48+2*p}, {off}\ns_addc_u32 s45, s{49+2*p}, 0\ns_mov_b32 s46, 0x100000\ns_mov_b32 s47, 0x20000")
            if mode == "lat":
                P(f"s_mov_b32 s96, 0\ns_cmp_lg_u32 s2, 0\ns_cbranch_scc1 L_nolat")
                P(f"v_mov_b32 v30, 0\ns_lshl_b32 s97, s{sWave}, 17\nbuffer_load_dword v31, v30, s[44:47], s97 offen\ns_waitcnt vmcnt(0)\ns_memrealtime s[98:99]\ns_waitcnt lgkmcnt(0)")
                for k in range(16):
                    P(f"s_add_u32 s97, s97, 4352\nbuffer_load_dword v31, v30, s[44:47], s97 offen\ns_waitcnt vmcnt(0)")
                P("s_memrealtime s[100:101]\ns_waitcnt lgkmcnt(0)\ns_sub_u32 s96, s100, s98\nL_nolat:")
                P("L_w0:\ns_memrealtime s[98:99]\ns_waitcnt lgkmcnt(0)\ns_sub_u32 s98, s98, s92\ns_cmp_lt_u32 s98, 2000\ns_cbranch_scc1 L_w0")
                P("s_add_u32 s94, s92, s96")
        P(f"s_cmp_eq_u32 s{sBr}, 0")
        for i in range(5): P(f"s_cselect_b64 s[{48+2*i}:{49+2*i}], s[{48+2*i}:{49+2*i}], s[{58+2*i}:{59+2*i}]")
        def mk(d, p, off, size):
            P(f"s_add_u32 s{d}, s{p}, {off}\ns_addc_u32 s{d+1}, s{p+1}, 0\ns_mov_b32 s{d+2}, {size}\ns_mov_b32 s{d+3}, 0x20000")
        P(f"s_mul_i32 s{sTmp}, s{sB}, 102400"); mk(sX, 48, f"s{sTmp}", 102400)
        P(f"s_lshl_b32 s{sTmp2}, s{sJ}, 2\ns_add_u32 s{sTmp2}, s{sTmp2}, s{sWave}\ns_lshl_b32 s{sTmp}, s{sTmp2}, 8")
        for j in range(4):
            mk(sW + 4*j, 54, f"s{sTmp}", 640*8192 - 3*8192 - 31*256 )
            if j < 3: P(f"s_add_u32 s{sTmp}, s{sTmp}, 8192")
        self.xgroup(0, P.code)
        self.wloads(0, P.code)
        self.wloads(1, P.code)
        for g in range(1, 5):
            if o.x_issue[g] < 0: self.xgroup(g, P.code)
        self.wloads(2, P.code)
        P(f"s_lshl_b32 s{sTmp}, s{sB}, 5\ns_add_u32 s{sTmp}, s{sTmp}, s{sTmp2}\ns_mul_i32 s{sTmp}, s{sTmp}, 20480")
        mk(sK, 50, f"s{sTmp}", 20480); mk(sV, 52, f"s{sTmp}", 20480)
        P(f"s_mul_i32 s{sTmp}, s{sJ}, 655360"); mk(sWo, 56, f"s{sTmp}", 655360)
        P(f"""
        s_lshl_b32 s{sTmp}, s{sBr}, 4
        s_add_u32 s{sTmp}, s{sTmp}, s{sB}
        s_lshl_b32 s{sTmp}, s{sTmp}, 3
        s_add_u32 s{sTmp}, s{sTmp}, s{sJ}
        s_mul_i32 s{sTmp}, s{sTmp}, 102400
        s_mul_i32 s{sTmp2}, s{sWave}, 2560
        s_add_u32 s{sTmp}, s{sTmp}, s{sTmp2}
        """)
        mk(sWs, 72, f"s{sTmp}", 102400 - 3*2560)
        if o.stamps or o.dump:
            mk(sMisc, 72, 0x8000000, 0x8000000)
        P(f"s_mov_b32 s{sSelLo}, 0x05040100\ns_mov_b32 s{sSelHi}, 0x07060302")
        c = math.log2(math.e) / math.sqrt(128.0)
        import struct
        P(f"s_mov_b32 s{sC}, {hex(struct.unpack('<I', struct.pack('<f', c))[0])}")
        P(f"""
        s_add_u32 s{sBlk}, s{sJ}, s{sPb}
        s_add_u32 s{sBlk}, s{sBlk}, 1
        s_sub_u32 s{sTmp}, s{sBlk}, 10
        s_cselect_b32 s{sBlk}, s{sBlk}, s{sTmp}
        s_mul_i32 s{sPb}, s{sBlk}, 10240
        s_lshl_b32 s{sBlk}, s{sBlk}, 7
        """)
        P(f"""
        v_and_b32 v20, 6, v17
        v_xor_b32 v20, v16, v20
        v_lshlrev_b32 v21, 7, v17
        v_lshl_add_u32 v21, v20, 4, v21
        s_lshl_b32 s{sTmp}, s{sFlip}, 6
        v_xor_b32 v{vXa}, s{sTmp}, v21
        v_xor_b32 v{vXb}, 64, v{vXa}
        v_xor_b32 v20, v17, v16
        v_lshlrev_b32 v21, 8, v16
        v_lshl_add_u32 v{vKd}, v20, 4, v21
        v_lshlrev_b32 v20, 1, v16
        v_xor_b32 v20, v17, v20
        v_lshl_add_u32 v{vVd}, v20, 4, v21
        v_lshrrev_b32 v22, 2, v17
        v_and_b32 v23, 3, v17
        v_and_b32 v24, 1, v22
        v_lshrrev_b32 v25, 1, v22
        v_mul_u32_u24 v24, 2176, v24
        v_lshl_add_u32 v24, v25, 10, v24
        v_mul_u32_u24 v25, 272, v23
        v_add_u32 v24, v24, v25
        v_lshl_add_u32 v24, v16, 6, v24
        v_add_u32 v{vKr}, s{sT}, v24
        v_and_b32 v24, 1, v16
        v_lshrrev_b32 v25, 1, v16
        v_mul_u32_u24 v24, 2176, v24
        v_lshl_add_u32 v24, v25, 10, v24
        v_mul_u32_u24 v25, 288, v22
        v_add_u32 v24, v24, v25
        v_lshl_add_u32 v24, v23, 3, v24
        v_add_u32 v{vVr}, s{sT}, v24
        v_lshlrev_b32 v{vL16}, 4, v0
        v_lshlrev_b32 v{vL8}, 3, v0
        v_mov_b32 v20, 0x3f803f80
        """)
        for i in range(4): P(f"v_accvgpr_write_b32 a{aONE+i}, v20")

    def xgroup(self, g, L):
        for e in range(5):
            if e % 4 == 0: L.append(I(f"s_add_u32 m0, s{sXm}, {g*20480 + e*1024}"))
            L.append(I(f"s_add_u32 s{sTmp3}, s{sXp}, {e*10240 - (e%4)*1024}"))
            L.append(I(f"buffer_load_dwordx4 v{vXd}, {srd(sX)}, s{sTmp3} offen offset:{(e%4)*1024} {self.o.x_mod} lds", tag=f"x{g}"))
        if g < 4:
            L.append(I(f"s_add_u32 s{sXp}, s{sXp}, 256"))
            L.append(I(f"s_sub_u32 s{sTmp3}, s{sXp}, 1280"))
            L.append(I(f"s_cselect_b32 s{sXp}, s{sXp}, s{sTmp3}"))
    def wloads(self, i, L):
        base = STG + 32 * (i % 3)
        for j in range(8):
            va = (vWe0, vWe1)[j >> 2] if i % 2 == 0 else (vWo0, vWo1)[j >> 2]
            L.append(I(f"buffer_load_dwordx4 {vr('v', base + 4*j, 4)}, v{va}, {srd(sW + 4*(j&3))}, s{sP} offen {self.o.w_mod}", tag=f"w{i}"))
        if i % 2 == 1 and i < 19:
            L.append(I(f"s_add_u32 s{sP}, s{sP}, 0x80000"))
            L.append(I(f"s_sub_u32 s{sTmp}, s{sP}, 0x500000"))
            L.append(I(f"s_cselect_b32 s{sP}, s{sP}, s{sTmp}"))
    def perms(self, i, p):
        base = STG + 32 * (i % 3); L = []
        for hb in range(2):
            for q in range(4):
                L.append(I(f"v_perm_b32 v{WF + 8*(p&1) + 4*hb + q}, v{base + 4*(2*q+1) + p}, v{base + 4*(2*q) + p}, s{(sSelLo, sSelHi)[hb]}"))
        return L
    def xreads(self, i):
        va = vXa if i % 2 == 0 else vXb
        return [I(f"ds_read_b128 {vr('a', aXF + 20*(i%2) + 4*mt, 4)}, v{va} offset:{((i>>1)%5)*10240 + mt*2048}", tag=f"xr{i}") for mt in range(5)]
    def kv_dma(self, u):
        isv = u >= 5; kt = u - 5 if isv else u; slot = u % 3
        s = srd(sV if isv else sK); va = vVd if isv else vKd; m = self.o.kv_mod
        L = []
        if u >= 3: L.append(I(f"WAITLG kvr{u-3}"))
        L += [I(f"s_add_u32 m0, s{sT}, {slot*USZ}"), I(f"s_mov_b32 s{sTmp2}, {kt*4096}")]
        for e in range(4):
            if e == 2: L.append(I(f"s_add_u32 m0, s{sT}, {slot*USZ + 128}"))
            L.append(I(f"buffer_load_dwordx4 v{va}, {s}, s{sTmp2} offen offset:{1024*e} {m} lds", tag=f"kv{u}"))
        return L
    def kv_reads(self, units):
        L = [I("WAITVM " + " ".join(f"kv{u}" for u in units), mem_w=["T"])]
        ku = [u for u in units if u < 5]; vu = [u for u in units if u >= 5]
        for s in range(4):
            if not ku: break
            va = vKr
            if s: L.append(I(f"v_xor_b32 v{vTa}, {16*s}, v{vKr}")); va = vTa
            for u in ku:
                L.append(I(f"ds_read_b128 {vr('a', aK + 16*u + 4*s, 4)}, v{va} offset:{(u%3)*USZ}", tag=f"kvr{u}", mem_r=["T"]))
        for tl in range(4):
            if not vu: break
            va = vVr
            if tl: L.append(I(f"v_xor_b32 v{vTb}, {32*tl}, v{vVr}")); va = vTb
            for u in vu:
                kt = u - 5
                for th in range(2):
                    T = tl + 4*th
                    d = (aV0, aV1)[kt >> 1] + 4*T + 2*(kt & 1) if kt < 4 else aV2 + 2*T
                    L.append(I(f"ds_read_b64_tr_b16 {vr('a', d, 2)}, v{va} offset:{(u%3)*USZ + 128*th}", tag=f"kvr{u}", mem_r=["T"]))
        return L
    def wo_dma(self, n):
        r, q = divmod(n, 4); L = []
        L.append(I(f"s_add_u32 m0, s{sW4k}, {(n%5)*16384}"))
        L.append(I(f"s_add_u32 s{sTmp2}, s{sBlk}, {q*163840}"))
        for e in range(4):
            L.append(I(f"buffer_load_dwordx4 v{1+e}, {srd(sWo)}, s{sTmp2} offen offset:{1024*e} {self.o.wo_mod} lds", tag=f"wo{n}"))
        if q == 3 and r < 9:
            L += [I(f"s_add_u32 s{sBlk}, s{sBlk}, 128"), I(f"s_sub_u32 s{sTmp}, s{sBlk}, 1280"), I(f"s_cselect_b32 s{sBlk}, s{sBlk}, s{sTmp}")]
        return L

    def qproj(self):
        P = self.P; o = self.o
        P("WAITVM x0\ns_barrier")
        P.add(self.xreads(0)); P.add(self.perms(0, 0))
        self.mstamp(0)
        M = []
        for i in range(20):
            for p in range(4):
                for mt in range(5):
                    for hb in range(2):
                        t = 2*p + hb; c = reg(acc(t, mt), 4)
                        M.append(I(f"v_mfma_f32_16x16x32_bf16 {c}, {vr('v', WF + 8*(p&1) + 4*hb, 4)}, {vr('a', aXF + 20*(i%2) + 4*mt, 4)}, {c if i else 0}"))
        S = Slots(M)
        def seq(L, lo, hi, step=0.0):
            p = lo
            for k, ins in enumerate(L):
                p = S.put(max(p, int(lo + k*step)), ins, hi)
            return p
        for i in range(20):
            b = 40*i
            for p in range(4):
                ni, np_ = (i, p+1) if p < 3 else (i+1, 0)
                if ni >= 20: continue
                if np_ == 0: S.put(b + 29, I(f"WAITVM w{ni}"), b + 29)
                seq(self.perms(ni, np_), b + 10*p, b + 10*p + 3, 0.5)
            if i < 19: S.put(b + 39, I(f"WAITLG xr{i+1}"), b + 39)
        for i in range(19):
            b = 40*i; L = self.xreads(i+1); lo = b + 4
            if (i+1) % 4 == 0:
                S.put(lo, I(f"WAITVM x{(i+1)//4}"), lo); S.put(lo, I("s_barrier"), lo); lo += 1
            if i + 1 == 10: S.put(lo, I(f"v_add_u32 v{vXa}, 51200, v{vXa}"), lo)
            if i + 1 == 11: S.put(lo, I(f"v_add_u32 v{vXb}, 51200, v{vXb}"), lo)
            S.put(lo, L[0], lo)
            for k in range(1, 5): S.put(b + 4 + 5*k, L[k], b + 4 + 5*k)
        vm = []
        for i in range(3, 20):
            L = []; self.wloads(i, L)
            lo = 40*(i-3) + 30
            for k, ins in enumerate(L): vm.append((lo + 5 + 10*(min(k,7)//2) + 2*(min(k,7)&1), 0, ins, 40*(i-1) + 10))
        for g in range(5):
            if o.x_issue[g] >= 0:
                L = []; self.xgroup(g, L)
                for ins in L: vm.append((40*o.x_issue[g] + 4, 1, ins, None))
        for u in range(10):
            for ins in self.kv_dma(u): vm.append((40*o.kv_issue[u] + 4, 2, ins, None))
        vm.sort(key=lambda x: (x[0], x[1]))
        p = 0
        for lo, _, ins, hi in vm:
            p = S.put(max(p, lo), ins, None if hi is None else max(hi, p))
        for st in sorted(set(o.kv_read.values())):
            if st >= 20: continue
            seq(self.kv_reads([u for u in range(10) if o.kv_read[u] == st]), 40*st, 40*st + 38, 1)
        for i in o.stq:
            L = []; self.stamp(L)
            for ins in L: S.put(40*i + 5, ins, 40*i + 5)
        S.put(40*19 + 4, I("s_barrier"))
        P.add(S.emit())
        print("; qproj slot overflows:", S.over, file=sys.stderr)
        self.mstamp(1)

    def attention(self):
        P = self.P; o = self.o; L = []
        A = lambda t, **kw: L.append(I(t, **kw))
        late = [u for u in range(10) if o.kv_read[u] >= 20]
        A("v_lshrrev_b32 v5, 3, v0"); A("v_and_b32 v6, 7, v0"); A("v_lshrrev_b32 v7, 4, v0"); A("v_lshlrev_b32 v7, 1, v7")
        A("v_xor_b32 v6, v6, v7"); A("v_mul_u32_u24 v5, 1280, v5"); A("v_lshl_add_u32 v1, v6, 4, v5")
        A(f"s_mul_i32 s{sTmp}, s{sWave}, 40960"); A(f"v_add_u32 v1, s{sTmp}, v1")
        for e in range(1, 4): A(f"v_add_u32 v{1+e}, {e*9216}, v1")
        A(f"v_add_u32 v5, s{sT}, v{vL16}")
        A(f"s_mul_i32 s{sTmp}, s{sWave}, 5120"); A(f"s_add_u32 s{sTmp}, s{sTmp}, 81920"); A(f"v_add_u32 v6, s{sTmp}, v{vL16}")
        for n in range(5): L += self.wo_dma(n)
        R = lambda mt, k: (ACC + 32*mt + k) if mt < 4 else (112 + k if k < 16 else k)
        Q = lambda mt: STG + 16*mt
        for mt in range(5):
            if mt == 4:
                for k in range(32): A(f"v_accvgpr_read_b32 v{R(4,k)}, a{aACC4+k}")
            for s in range(4):
                for e in range(4):
                    A(f"v_cvt_pk_bf16_f32 v{Q(mt)+4*s+e}, v{R(mt, 8*e+s)}, v{R(mt, 8*e+4+s)}")
            if o.dump == "q": continue
            for s in range(4):
                for kt in range(5):
                    c = vr('v', R(mt, 4*kt), 4)
                    A(f"v_mfma_f32_16x16x32_bf16 {c}, {vr('a', aK+16*kt+4*s, 4)}, {vr('v', Q(mt)+4*s, 4)}, {c if s else 0}")
            m0, m1, m2 = R(mt, 20), R(mt, 21), R(mt, 22)
            A(f"v_max3_f32 v{m0}, v{R(mt,0)}, v{R(mt,1)}, v{R(mt,2)}")
            A(f"v_max3_f32 v{m1}, v{R(mt,3)}, v{R(mt,4)}, v{R(mt,5)}")
            for k in range(6, 20, 2):
                d = (m0, m1)[(k//2) & 1]
                A(f"v_max3_f32 v{d}, v{d}, v{R(mt,k)}, v{R(mt,k+1)}")
            A(f"v_max_f32 v{m0}, v{m0}, v{m1}")
            for sw in ("32", "16"):
                A(f"v_mov_b32 v{m1}, v{m0}"); A(f"v_permlane{sw}_swap_b32 v{m0}, v{m1}"); A(f"v_max_f32 v{m0}, v{m0}, v{m1}")
            A(f"v_mul_f32 v{m0}, s{sC}, v{m0}")
            for k in range(20):
                A(f"v_fma_f32 v{R(mt,k)}, v{R(mt,k)}, s{sC}, -v{m0}")
                A(f"v_exp_f32 v{R(mt,k)}, v{R(mt,k)}")
            for k in range(10): A(f"v_cvt_pk_bf16_f32 v{Q(mt)+k}, v{R(mt,2*k)}, v{R(mt,2*k+1)}")
        if late: L += self.kv_reads(late)
        for mt in range(5):
            if o.dump == "q": break
            sm = vr('v', Q(mt)+12, 4)
            for u in range(3):
                n = 4 if u < 2 else 2; op = "v_mfma_f32_16x16x32_bf16" if u < 2 else "v_mfma_f32_16x16x16_bf16"
                pb = vr('v', Q(mt)+4*u, n)
                A(f"{op} {sm}, {vr('a', aONE, n)}, {pb}, {sm if u else 0}")
                for T in range(8):
                    c = vr('v', R(mt, 4*T), 4)
                    A(f"{op} {c}, {vr('a', (aV0, aV1, aV2)[u] + n*T, n)}, {pb}, {c if u else 0}")
            A(f"v_rcp_f32 v{Q(mt)+12}, v{Q(mt)+12}")
            for s in range(4):
                for k in range(8): A(f"v_mul_f32 v{R(mt,8*s+k)}, v{R(mt,8*s+k)}, v{Q(mt)+12}")
                for k in range(4): A(f"v_cvt_pk_bf16_f32 v{R(mt,8*s+k)}, v{R(mt,8*s+2*k)}, v{R(mt,8*s+2*k+1)}")
                f = 4*mt + s
                A(f"ds_write_b128 v{5 if f < 15 else 6}, {vr('v', R(mt,8*s), 4)} offset:{1024*(f if f < 15 else f-15)}", mem_w=["T"] if f == 0 else [], mem_r=["T"])
        P.add(list_schedule(L, history=P.code[-10:], verbose=True))
        self.mstamp(2)

    def outproj(self):
        P = self.P; o = self.o
        OA = 128; WR = 148; PK = 164
        F = lambda q, mt, s: (lambda n: ('a', 4*n) if n < 64 else ('v', 192 + 4*(n-64)))(q*20 + mt*4 + s)
        P(f"""
        v_lshrrev_b32 v16, 2, v0
        v_lshrrev_b32 v17, 3, v0
        v_and_b32 v17, 3, v17
        v_xor_b32 v17, s{sWave}, v17
        v_and_b32 v18, 3, v0
        v_lshlrev_b32 v16, 7, v16
        v_lshl_add_u32 v16, v17, 5, v16
        v_lshl_add_u32 v7, v18, 3, v16
        v_add_u32 v8, 0x10000, v7
        v_add_u32 v9, {XREG}, v{vL16}
        v_add_u32 v10, 81920, v{vL16}
        WAITVM wo0
        s_waitcnt lgkmcnt(0)
        s_barrier
        """)
        self.mstamp(3)
        def oread(q, mt, s):
            f = 4*mt + s
            a = f"v9 offset:{TSTR*q + 1024*f}" if f < 15 else f"v10 offset:{5120*q + 1024*(f-15)}"
            return I(f"ds_read_b128 {reg(F(q,mt,s),4)}, {a}")
        def wread(k):
            n, s = divmod(k, 4); pos = n % 5
            return [I(f"ds_read_b64_tr_b16 {vr('v', WR + 4*(k%4) + 2*hh, 2)}, v{8 if pos == 4 else 7} offset:{(pos%4)*16384 + s*4096 + hh*2048}") for hh in range(2)]
        def flush(r):
            cv = [[I(f"v_cvt_pk_bf16_f32 v{PK+2*mt+h}, v{OA+4*mt+2*h}, v{OA+4*mt+2*h+1}") for h in range(2)] for mt in range(5)]
            st = [I(f"buffer_store_dwordx4 {vr('v', PK, 4)}, v{vL16}, {srd(sWs)}, s{sPb} offen {o.part_mod}", tag=f"ps{r}"),
                  I(f"buffer_store_dwordx4 {vr('v', PK+4, 4)}, v{vL16}, {srd(sWs)}, s{sPb} offen offset:1024 {o.part_mod}", tag=f"ps{r}"),
                  I(f"buffer_store_dwordx2 {vr('v', PK+8, 2)}, v{vL8}, {srd(sWs)}, s{sPb} offen offset:2048 {o.part_mod}", tag=f"ps{r}"),
                  I(f"s_add_u32 s{sPb}, s{sPb}, 10240"), I(f"s_sub_u32 s{sTmp3}, s{sPb}, 102400"), I(f"s_cselect_b32 s{sPb}, s{sPb}, s{sTmp3}")]
            return cv, st
        P.add(wread(0)); P.add([oread(0, mt, 0) for mt in range(5)]); P.add(wread(1)); P.add([oread(0, mt, 1) for mt in range(5)])
        M = []
        for k in range(160):
            q, s = (k // 4) % 4, k % 4
            for mt in range(5):
                c = vr('v', OA + 4*mt, 4)
                M.append(I(f"v_mfma_f32_16x16x32_bf16 {c}, {vr('v', WR + 4*(k%4), 4)}, {reg(F(q,mt,s),4)}, {c if k % 16 else 0}"))
        S = Slots(M)
        stores = {}
        for r in range(9):
            cv, st = flush(r)
            for mt in range(5):
                for ins in cv[mt]: S.put(80*r + 79 + mt, ins, 80*r + 79 + mt)
            stores[r] = st
        vm = []
        for k in range(158):
            b = 5*k; lo = b
            if (k + 2) % 4 == 0:
                n = k // 4
                p = S.put(b, I(f"WAITVM wo{n+1}"), b); p = S.put(b, I("s_barrier"), b); lo = b + 1
                if n >= 1 and n + 4 < 40:
                    for j, ins in enumerate(self.wo_dma(n + 4)): vm.append((b + 1 + max(0, 4*(min(j,5)-2)), ins))
            L = wread(k + 2)
            if k + 2 < 16: L += [oread((k+2)//4, mt, (k+2)%4) for mt in range(5)]
            p = lo
            for ins in L: p = S.put(p, ins, b + 4)
        for r in o.sto:
            L = []; self.stamp(L)
            for ins in L: S.put(80*r + 6, ins, 80*r + 6)
        for r in range(9):
            for j, ins in enumerate(stores[r]): vm.append((80*r + 85 + min(j, 2), ins))
        vm.sort(key=lambda x: x[0])
        p = 0
        for lo, ins in vm: p = S.put(max(p, lo), ins)
        P.add(S.emit())
        print("; outproj slot overflows:", S.over, file=sys.stderr)
        cv, st = flush(9)
        for mt in range(5): P.add(cv[mt])
        P.add(st[:3])
        self.mstamp(4)

    def dump_regs(self, regs):
        P = self.P
        P(f"s_waitcnt vmcnt(0) lgkmcnt(0)\ns_lshl_b32 s{sTmp}, s2, 2\ns_add_u32 s{sTmp}, s{sTmp}, s{sWave}\ns_mul_i32 s{sTmp}, s{sTmp}, {len(regs)*256}\nv_lshlrev_b32 v1, 2, v0")
        for r in regs:
            P(f"buffer_store_dword {r}, v1, {srd(sMisc)}, s{sTmp} offen\ns_add_u32 s{sTmp}, s{sTmp}, 256\ns_waitcnt vmcnt(0)")

    def finish(self):
        P = self.P
        if self.o.stamps:
            P("s_waitcnt vmcnt(0)"); self.stamp()
            P("s_memrealtime s[96:97]\ns_waitcnt lgkmcnt(0)")
            P(f"s_lshl_b32 s{sTmp}, s2, 2\ns_add_u32 s{sTmp}, s{sTmp}, s{sWave}\ns_lshl_b32 s{sTmp}, s{sTmp}, 7\nv_mov_b32 v1, 0\ns_mov_b64 exec, 1")
            src = [92, 96, 94] + [STAMP0 + 2*i for i in range(self.nst)]
            for k, s in enumerate(src):
                P(f"v_mov_b32 v2, s{s}\nbuffer_store_dword v2, v1, {srd(sMisc)}, s{sTmp} offen offset:{4*k}")
        if self.o.probe is not None:
            P("s_waitcnt vmcnt(0)"); self.stamp()
            P("s_waitcnt lgkmcnt(0)\ns_sub_u32 s94, s94, s92\ns_mul_i32 s94, s94, 4\ns_add_u32 s94, s94, 10000")
            P("L_spin:\ns_memrealtime s[96:97]\ns_waitcnt lgkmcnt(0)\ns_sub_u32 s96, s96, s92\ns_cmp_lt_u32 s96, s94\ns_cbranch_scc1 L_spin")
        P("L_end:\ns_endpgm")

    def build(self):
        o = self.o
        self.prologue(); self.qproj(); self.attention()
        if o.dump == "q": self.dump_regs([f"v{STG+k}" for k in range(80)])
        elif o.dump == "o":
            R = lambda mt, k: (ACC + 32*mt + k) if mt < 4 else (112 + k if k < 16 else k)
            self.dump_regs([f"v{R(mt, 8*s+k)}" for mt in range(5) for s in range(4) for k in range(4)])
        else: self.outproj()
        self.finish()
        wl = []; nl = []
        code, _, _ = insert_waits(self.P.code, log=wl)
        code = insert_nops(code, log=nl)
        print(f"; auto waits {len(wl)}, auto nops {len(nl)} ({sum(n for n,_ in nl)} states)", file=sys.stderr)
        self.wl, self.nl = wl, nl
        Q = Prog(); Q.code = code
        return Q.text()

def reduce_kernel():
    P = Prog()
    P("s_cmp_ge_u32 s2, 320\ns_cbranch_scc1 L_rend")
    P("s_load_dwordx2 s[4:5], s[0:1], 80\ns_load_dwordx2 s[6:7], s[0:1], 96")
    P("v_lshrrev_b32 v1, 6, v0\nv_and_b32 v0, 63, v0\nv_readfirstlane_b32 s3, v1")
    P("""
    s_mul_i32 s16, s2, 6554
    s_lshr_b32 s16, s16, 16
    s_mul_i32 s17, s16, 10
    s_sub_u32 s17, s2, s17
    s_lshl_b32 s17, s17, 2
    s_add_u32 s17, s17, s3
    s_mul_i32 s18, s16, 819200
    s_mul_i32 s19, s17, 2560
    s_add_u32 s18, s18, s19
    v_lshlrev_b32 v2, 4, v0
    v_lshlrev_b32 v3, 3, v0
    s_waitcnt lgkmcnt(0)
    s_mov_b32 s8, s6
    s_mov_b32 s9, s7
    s_mov_b32 s10, 26214400
    s_mov_b32 s11, 0x20000
    s_mov_b32 s12, s4
    s_mov_b32 s13, s5
    s_mov_b32 s14, 3276800
    s_mov_b32 s15, 0x20000
    """)
    for s in range(8):
        b = 32 + 12*s
        P(f"buffer_load_dwordx4 v[{b}:{b+3}], v2, s[8:11], s18 offen")
        P(f"buffer_load_dwordx4 v[{b+4}:{b+7}], v2, s[8:11], s18 offen offset:1024")
        P(f"buffer_load_dwordx2 v[{b+8}:{b+9}], v3, s[8:11], s18 offen offset:2048")
        P("s_add_u32 s18, s18, 102400")
    P("""
    s_and_b32 s19, s16, 15
    s_lshr_b32 s20, s16, 4
    s_mul_i32 s19, s19, 204800
    s_mul_i32 s20, s20, 1280
    s_add_u32 s19, s19, s20
    s_lshl_b32 s20, s17, 5
    s_add_u32 s19, s19, s20
    v_and_b32 v4, 15, v0
    v_lshrrev_b32 v5, 4, v0
    v_mul_u32_u24 v4, 2560, v4
    v_lshl_add_u32 v4, v5, 3, v4
    """)
    for s in range(8):
        b = 32 + 12*s
        for k in range(10):
            if s == 0:
                P(f"v_lshlrev_b32 v{8+2*k}, 16, v{b+k}\nv_and_b32 v{9+2*k}, 0xffff0000, v{b+k}")
            else:
                P(f"v_lshlrev_b32 v6, 16, v{b+k}\nv_and_b32 v7, 0xffff0000, v{b+k}\nv_add_f32 v{8+2*k}, v{8+2*k}, v6\nv_add_f32 v{9+2*k}, v{9+2*k}, v7")
    for mt in range(5):
        P(f"v_cvt_pk_bf16_f32 v{32+2*mt}, v{8+4*mt}, v{9+4*mt}\nv_cvt_pk_bf16_f32 v{33+2*mt}, v{10+4*mt}, v{11+4*mt}")
        P(f"buffer_store_dwordx2 v[{32+2*mt}:{33+2*mt}], v4, s[12:15], s19 offen\ns_add_u32 s19, s19, 40960")
    P("L_rend:\ns_endpgm")
    code, _, _ = insert_waits(P.code); code = insert_nops(code)
    Q = Prog(); Q.code = code
    return Q.text()

def desc(name, vgpr, accum):
    return f""".amdhsa_kernel {name}
  .amdhsa_next_free_vgpr {vgpr}
  .amdhsa_next_free_sgpr 102
  .amdhsa_accum_offset {accum}
  .amdhsa_group_segment_fixed_size 0
  .amdhsa_kernarg_size 104
  .amdhsa_user_sgpr_count 2
  .amdhsa_user_sgpr_kernarg_segment_ptr 1
  .amdhsa_system_sgpr_workgroup_id_x 1
  .amdhsa_float_denorm_mode_32 3
.end_amdhsa_kernel
"""
def full(o):
    g = Gen(o); body = g.build()
    main = NAME + "_kernel"
    t = f"; @launch kernel={main} grid=(256,1,1) block=(256,1,1) lds={LDS}\n; @launch kernel=reduce_kernel grid=(320,1,1) block=(256,1,1) lds=0\n"
    for i in range(o.empty): t += "; @launch kernel=empty_kernel grid=(1,1,1) block=(64,1,1) lds=0\n"
    t += '.amdgcn_target "amdgcn-amd-amdhsa--gfx950"\n.text\n'
    t += f".globl {main}\n.p2align 8\n.type {main},@function\n{main}:\n" + body
    t += ".globl reduce_kernel\n.p2align 8\n.type reduce_kernel,@function\nreduce_kernel:\n" + reduce_kernel()
    if o.empty: t += ".globl empty_kernel\n.p2align 8\n.type empty_kernel,@function\nempty_kernel:\n    s_endpgm\n"
    t += '.section .rodata,"a"\n.p2align 6\n' + desc(main, 512, 256) + ".p2align 6\n" + desc("reduce_kernel", 128, 128)
    if o.empty: t += ".p2align 6\n" + desc("empty_kernel", 8, 8)
    return t, g

if __name__ == "__main__":
    o = Opt()
    out = sys.argv[1]
    for a in sys.argv[2:]:
        k, v = a.split("=", 1); setattr(o, k, eval(v))
    t, g = full(o)
    open(out, "w").write(t)
```
